```python
import torch

def _softmax(x, axis=-1):
    return torch.softmax(x, dim=axis)
def _gelu(x):
    return torch.nn.functional.gelu(x, approximate="tanh")
def _silu(x):
    return torch.nn.functional.silu(x)
def _sigmoid(x):
    return torch.sigmoid(x)
def _layernorm(x, axis=-1, eps=1e-5):
    m = x.mean(dim=axis, keepdim=True)
    v = x.var(dim=axis, keepdim=True, unbiased=False)
    return (x - m) / torch.sqrt(v + eps)
def _scatter_add(tgt, idx, src, axis=0):
    return tgt.clone().index_add_(axis, idx, src)
def _segment_sum(src, seg, n):
    out = torch.zeros((n,) + src.shape[1:], dtype=src.dtype)
    return out.index_add_(0, seg, src)
def _pad(x, pw):
    flat = tuple(v for pair in reversed(pw) for v in pair)
    return torch.nn.functional.pad(x, flat)

kernel_name = 'interleave_layers__spectral_fnet__glu_gated_glu__prompt'

def setup_inputs():

    _w = (lambda a: (lambda t: t.to(torch.bfloat16) if t.is_floating_point() else t)(torch.as_tensor(a)))
    def _A_setup():
        B, S, D = 1, 2048, 640
        ns = torch.arange(S)[:, None] * torch.arange(S)[None, :]
        nd = torch.arange(D)[:, None] * torch.arange(D)[None, :]
        Ws_re = torch.cos(-2.0 * torch.pi * ns / S).to(float)
        Ws_im = torch.sin(-2.0 * torch.pi * ns / S).to(float)
        Wd_re = torch.cos(-2.0 * torch.pi * nd / D).to(float)
        Wd_im = torch.sin(-2.0 * torch.pi * nd / D).to(float)
        return {
            "x": _w((lambda *s: torch.randn(*s, dtype=torch.bfloat16) * 0.05)(B, S, D)),
            "dft_seq_re": _w(Ws_re),
            "dft_seq_im": _w(Ws_im),
            "dft_hid_re": _w(Wd_re),
            "dft_hid_im": _w(Wd_im),
        }
    _A_in = _A_setup()

    def _B_setup():
        B, S, D, F = 1, 2048, 640, 1536
        return {
            "x": _w((lambda *s: torch.randn(*s, dtype=torch.bfloat16) * 0.05)(B, S, D)),
            "w_gate": _w((lambda *s: torch.randn(*s, dtype=torch.bfloat16) * 1.6)(D, F)),
            "w_up": _w((lambda *s: torch.randn(*s, dtype=torch.bfloat16) * 0.8)(D, F)),
            "w_down": _w((lambda *s: torch.randn(*s, dtype=torch.bfloat16) * 0.8)(F, D)),
        }
    _B_in = _B_setup()

    return {
        "A_x": _A_in["x"],
        "A_dft_seq_re": _A_in["dft_seq_re"],
        "A_dft_seq_im": _A_in["dft_seq_im"],
        "A_dft_hid_re": _A_in["dft_hid_re"],
        "A_dft_hid_im": _A_in["dft_hid_im"],
        "B_x": _B_in["x"],
        "B_w_gate": _B_in["w_gate"],
        "B_w_up": _B_in["w_up"],
        "B_w_down": _B_in["w_down"],
    }

def reference(A_x, A_dft_seq_re, A_dft_seq_im, A_dft_hid_re, A_dft_hid_im, B_x, B_w_gate, B_w_up, B_w_down):
    def _A_ref(x, dft_seq_re, dft_seq_im, dft_hid_re, dft_hid_im):
        a = torch.einsum("bsd,ed->bse", x, dft_hid_re)
        b = torch.einsum("bsd,ed->bse", x, dft_hid_im)
        y = torch.einsum("ts,bse->bte", dft_seq_re, a) - torch.einsum("ts,bse->bte", dft_seq_im, b)
        return y

    def _B_ref(x, w_gate, w_up, w_down):
        g = torch.einsum("bsd,df->bsf", x, w_gate)
        u = torch.einsum("bsd,df->bsf", x, w_up)
        h = _sigmoid(g) * u
        return torch.einsum("bsf,fd->bsd", h, w_down)

    x = A_x
    x = x + _A_ref(_layernorm(x, axis=-1), A_dft_seq_re, A_dft_seq_im, A_dft_hid_re, A_dft_hid_im)
    x = x + _B_ref(_layernorm(x, axis=-1), B_w_gate, B_w_up, B_w_down)
    x = x + _A_ref(_layernorm(x, axis=-1), A_dft_seq_re, A_dft_seq_im, A_dft_hid_re, A_dft_hid_im)
    x = x + _B_ref(_layernorm(x, axis=-1), B_w_gate, B_w_up, B_w_down)
    return x
```

```python
import re

_REG = re.compile(r"^(-|abs\()?([vas])(\d+|\[(\d+):(\d+)\])\)?$")

def regs_of(tok):
    tok = tok.strip()
    if tok in ("vcc",): return [("s", 106), ("s", 107)]
    if tok == "vcc_lo": return [("s", 106)]
    if tok == "vcc_hi": return [("s", 107)]
    if tok == "exec": return [("s", 126), ("s", 127)]
    if tok == "m0": return [("s", 124)]
    m = _REG.match(tok)
    if not m: return []
    t = m.group(2)
    if m.group(4) is not None:
        return [(t, i) for i in range(int(m.group(4)), int(m.group(5)) + 1)]
    return [(t, int(m.group(3)))]

TRANS = ("v_exp_f32", "v_log_f32", "v_rcp_f32", "v_rsq_f32", "v_sqrt_f32", "v_sin_f32", "v_cos_f32", "v_rcp_iflag_f32")

class Ins:
    def __init__(self, line):
        self.line = line
        s = line.split(";")[0].strip()
        parts = s.split(None, 1)
        self.op = parts[0]
        rest = parts[1] if len(parts) > 1 else ""
        ops = []; cur = ""; depth = 0
        for ch in rest:
            if ch == "[": depth += 1
            if ch == "]": depth -= 1
            if ch == "," and depth == 0: ops.append(cur.strip()); cur = ""
            else: cur += ch
        if cur.strip(): ops.append(cur.strip())
        self.mods = ""
        if ops:
            p = ops[-1].split(None, 1)
            ops[-1] = p[0]
            if len(p) > 1: self.mods = p[1]
        self.ops = ops
        op = self.op
        self.kind = "other"; self.w = []; self.r = []; self.srcA = []; self.srcB = []; self.srcC = []
        self.passes = 0; self.states = 1
        R = lambda i: regs_of(ops[i]) if i < len(ops) else []
        base = re.sub(r"_(e32|e64|dpp|sdwa)$", "", op)
        self.base = base
        if op == "s_nop":
            self.kind = "nop"; self.states = int(ops[0], 0) + 1
        elif op.startswith("v_mfma"):
            self.kind = "mfma"; self.w = R(0); self.srcA = R(1); self.srcB = R(2); self.srcC = R(3)
            self.r = self.srcA + self.srcB + self.srcC
            self.passes = 8 if "32x32x16" in op else 4
        elif op.startswith("v_"):
            self.kind = "valu"
            if base.startswith("v_cmp"):
                self.w = R(0); self.r = sum((R(i) for i in range(1, len(ops))), [])
                if base.startswith("v_cmpx"): self.w += regs_of("exec")
            elif base in ("v_permlane32_swap_b32", "v_permlane16_swap_b32"):
                self.w = R(0) + R(1); self.r = R(0) + R(1)
            elif base in ("v_add_co_u32", "v_sub_co_u32", "v_addc_co_u32"):
                self.w = R(0) + R(1); self.r = sum((R(i) for i in range(2, len(ops))), [])
            else:
                self.w = R(0); self.r = sum((R(i) for i in range(1, len(ops))), [])
                if base in ("v_fmac_f32", "v_dot2c_f32_bf16", "v_pk_fmac_f16", "v_writelane_b32"): self.r += R(0)
                if base == "v_cndmask_b32" and len(ops) == 3: self.r += regs_of("vcc")
        elif op.startswith("ds_"):
            self.kind = "ds"
            if op.startswith("ds_read") or op.startswith("ds_bpermute") or op.startswith("ds_swizzle") or op.startswith("ds_permute"):
                self.w = R(0); self.r = sum((R(i) for i in range(1, len(ops))), [])
            elif "rtn" in op:
                self.w = R(0); self.r = sum((R(i) for i in range(1, len(ops))), [])
            else:
                self.r = sum((R(i) for i in range(len(ops))), [])
        elif op.startswith("buffer_") or op.startswith("global_"):
            self.kind = "vmem"
            allm = " " + self.mods + " "
            self.lds = " lds " in allm or "load_lds" in op
            if op in ("buffer_wbl2", "buffer_inv"):
                pass
            elif "load" in op and not self.lds:
                self.w = R(0); self.r = sum((R(i) for i in range(1, len(ops))), [])
            elif "atomic" in op and " sc0 " in allm:
                self.w = R(0); self.r = sum((R(i) for i in range(0, len(ops))), [])
            else:
                self.r = sum((R(i) for i in range(len(ops))), [])
            if self.lds: self.r += regs_of("m0")
            self.store_data = []
            if "store" in op and ("x4" in op or "x3" in op):
                self.store_data = R(0) if op.startswith("buffer") else R(1)
        elif op.startswith("s_"):
            self.kind = "salu"
            if op.startswith("s_load") or op.startswith("s_memtime") or op.startswith("s_memrealtime") or op.startswith("s_buffer_load") or op.startswith("s_atomic"):
                self.kind = "smem"; self.w = R(0); self.r = sum((R(i) for i in range(1, len(ops))), [])
            elif op.startswith("s_cmp") or op.startswith("s_cbranch") or op in ("s_branch", "s_barrier", "s_waitcnt", "s_endpgm", "s_sleep", "s_setprio", "s_bitcmp1_b32", "s_bitcmp0_b32"):
                self.r = sum((R(i) for i in range(len(ops))), [])
            else:
                self.w = R(0); self.r = sum((R(i) for i in range(1, len(ops))), [])
                if "saveexec" in op: self.w += regs_of("exec")

def need_states(p, c):
    n = 0
    pw = set(p.w); cr = set(c.r); cw = set(c.w)
    vec = lambda s: {x for x in s if x[0] in "va"}
    sg = lambda s: {x for x in s if x[0] == "s"}
    if p.kind == "valu":
        if c.kind == "mfma" and vec(pw) & cr: n = max(n, 2)
        if c.kind == "mfma" and set(regs_of("exec")) & pw: n = max(n, 4)
        if c.kind == "valu":
            if c.base.startswith("v_permlane") and vec(pw) & cr: n = max(n, 2)
            if (c.op.endswith("_dpp") or "row_" in c.mods or "quad_perm" in c.mods) and vec(pw) & cr: n = max(n, 2)
            if c.base in ("v_readfirstlane_b32", "v_readlane_b32") and vec(pw) & cr: n = max(n, 1)
            if sg(pw) & cr: n = max(n, 4 if c.base in ("v_readlane_b32", "v_writelane_b32") else 2)
            if p.base in TRANS and c.base not in TRANS and vec(pw) & (cr | cw): n = max(n, 1)
            if p.base in TRANS and c.base in TRANS and vec(pw) & cr: n = max(n, 1)
            if p.base.startswith("v_dot") and vec(pw) & (cr | cw):
                if not (c.base == p.base and not (vec(pw) & set(sum((regs_of(o) for o in c.ops[1:3]), [])))): n = max(n, 3)
            if ("sdwa" in p.op or "op_sel" in p.mods) and vec(pw) & (cr | cw): n = max(n, 1)
            if p.base.startswith("v_cmpx"):
                if c.base in ("v_readfirstlane_b32", "v_readlane_b32", "v_writelane_b32") or c.base.startswith("v_permlane"): n = max(n, 4)
        if c.kind in ("vmem",) and sg(pw) & cr: n = max(n, 5)
        if c.kind in ("ds", "vmem") and p.base.startswith("v_dot") and vec(pw) & cr: n = max(n, 3)
        if c.kind in ("ds", "vmem") and p.base in TRANS and vec(pw) & cr: n = max(n, 1)
        if c.kind == "salu" and sg(pw) & cr: n = max(n, 1)
    if p.kind == "mfma":
        big = p.passes == 8
        if c.kind == "mfma":
            if pw & (set(c.srcA) | set(c.srcB)): n = max(n, 12 if big else 8)
            if pw & set(c.srcC):
                if not (c.srcC == p.w and c.passes == p.passes): n = max(n, 10 if big else 6)
            elif pw & cw: n = max(n, 12 if big else 8)
        elif c.kind in ("valu", "ds", "vmem"):
            if pw & (cr | cw): n = max(n, 12 if big else 8)
            if c.kind == "valu" and set(p.srcC) & cw: n = max(n, 7 if big else 3)
            if c.kind in ("ds", "vmem") and set(p.srcC) & cw: n = max(n, 7 if big else 3)
    if p.kind == "salu":
        if ("s", 124) in pw and c.kind == "vmem" and getattr(c, "lds", False): n = max(n, 1)
    if p.kind == "vmem" and getattr(p, "store_data", None):
        if set(p.store_data) & cw: n = max(n, 2)
    return n

class K:
    def __init__(self, name, grid=256, block=256, lds=0):
        self.name = name; self.grid = grid; self.block = block; self.lds = lds
        self.lines = []
        self.hist = []
        self.nv = 256; self.na = 0; self.ns = 102
        self._lab = 0
        self.vm = []
        self.lg = []
        self.nnop = 0
        self.tail = ""
    def _emit(self, l, tag=None):
        if l.endswith(":"):
            self.lines.append(l); return
        if l.startswith("."):
            self.lines.append("    " + l); return
        ins = Ins(l)
        dist = 0; need = 0
        for p in reversed(self.hist):
            req = need_states(p, ins)
            if req > dist: need = max(need, req - dist)
            dist += p.states
            if dist >= 20: break
        if need > 0:
            self.nnop += 1
            nop = Ins("s_nop %d" % (need - 1))
            self.lines.append("    s_nop %d" % (need - 1)); self.hist.append(nop)
        self.lines.append("    " + l); self.hist.append(ins)
        if len(self.hist) > 64: self.hist = self.hist[-32:]
        if ins.kind == "vmem": self.vm.append("STORE" if ("store" in ins.op or "atomic" in ins.op) else tag)
        if ins.kind == "ds": self.lg.append(tag)
        if ins.kind == "smem": self.lg.append("SMEM")
        if ins.op == "s_waitcnt":
            m = re.search(r"vmcnt\((\d+)\)", l)
            if m:
                n = int(m.group(1))
                if n == 0: self.vm = []
                else:
                    keep = []; nl = 0; nst = 0
                    for t in reversed(self.vm):
                        if t == "STORE":
                            if nst < n: keep.append(t); nst += 1
                        elif nl < n: keep.append(t); nl += 1
                    self.vm = keep[::-1]
            m = re.search(r"lgkmcnt\((\d+)\)", l)
            if m:
                n = int(m.group(1)); self.lg = self.lg[len(self.lg) - n:] if n < len(self.lg) and n > 0 else ([] if n == 0 else self.lg)
        for (t, i) in ins.w + ins.r:
            if t == "v": self.maxv = max(getattr(self, "maxv", 0), i)
            if t == "a": self.maxa = max(getattr(self, "maxa", -1), i)
            if t == "s" and i < 102: self.maxs = max(getattr(self, "maxs", 0), i)
    def e(self, s, tag=None):
        for l in s.split("\n"):
            l = l.split(";")[0].strip() if not l.strip().startswith(";") else ""
            if l: self._emit(l, tag)
    def c(self, s):
        self.lines.append("    ; " + s)
    def _cnt(self, q, tags):
        if not isinstance(tags, (list, set)): tags = [tags]
        idx = [i for i, t in enumerate(q) if t in tags]
        if not idx: return None
        return len([t for t in q[max(idx)+1:] if t != "STORE"])
    def wait(self, vm=None, lg=None):
        parts = []
        if vm is not None:
            n = self._cnt(self.vm, vm)
            if n is not None:
                assert n <= 63, "vmcnt overflow"
                parts.append("vmcnt(%d)" % n)
        if lg is not None:
            n = self._cnt(self.lg, lg)
            if n is not None:
                if "SMEM" in self.lg: n = 0
                n = min(n, 15)
                parts.append("lgkmcnt(%d)" % n)
        if parts: self.e("s_waitcnt " + " ".join(parts))
    def vmroom(self, n=1):
        if len(self.vm) + n > 63:
            self.e("s_waitcnt vmcnt(%d)" % (63 - n))
    def label(self, base="L"):
        self._lab += 1
        return "%s_%s_%d" % (base, self.name.replace("_kernel", ""), self._lab)
    def text(self):
        out = [".globl %s" % self.name, ".p2align 8", ".type %s,@function" % self.name, "%s:" % self.name]
        out += self.lines
        return "\n".join(out) + "\n" + self.tail
    def desc(self):
        nv = self.nv if self.nv else self.maxv + 1
        nv4 = (nv + 3) // 4 * 4
        total = nv4 + self.na if self.na else nv
        assert getattr(self, "maxv", 0) < nv4, (self.name, self.maxv, nv4)
        assert getattr(self, "maxa", -1) < self.na, (self.name, self.maxa, self.na)
        return (".amdhsa_kernel %s\n"
                "  .amdhsa_next_free_vgpr %d\n"
                "  .amdhsa_next_free_sgpr %d\n"
                "  .amdhsa_accum_offset %d\n"
                "  .amdhsa_group_segment_fixed_size 0\n"
                "  .amdhsa_kernarg_size 96\n"
                "  .amdhsa_user_sgpr_count 2\n"
                "  .amdhsa_user_sgpr_kernarg_segment_ptr 1\n"
                "  .amdhsa_system_sgpr_workgroup_id_x 1\n"
                "  .amdhsa_float_denorm_mode_32 3\n"
                ".end_amdhsa_kernel\n") % (self.name, total, self.ns, nv4)

def build_file(kernels, launches, header=""):
    out = []
    for h in header.strip().split("\n"):
        if h.strip(): out.append("; " + h.strip())
    for (k, g, b, lds) in launches:
        out.append("; @launch kernel=%s grid=(%d,1,1) block=(%d,1,1) lds=%d" % (k.name, g, b, lds))
    out.append('.amdgcn_target "amdgcn-amd-amdhsa--gfx950"')
    out.append(".text")
    for k in kernels:
        out.append(k.text())
    out.append('.section .rodata,"a"')
    for k in kernels:
        out.append(".p2align 6")
        out.append(k.desc())
    return "\n".join(out)

def vr(base, n=1, t="v"):
    return "%s%d" % (t, base) if n == 1 else "%s[%d:%d]" % (t, base, base + n - 1)
def ar(base, n=1): return vr(base, n, "a")
def sr(base, n=1): return vr(base, n, "s")
```

```python
import sys, math
from asmlib import *

WGU = 0x0
WD  = 0x400000
M2  = 0x600000
VB  = [0x700000, 0xA00000]
X1B = [0xD00000, 0x1000000]
HB  = [0x1300000, 0x1900000]
X2B = 0x1F00000
FLG = 0x2200000
WS_SIZE = 0x2400000
STAMP = 200 << 20
LOG2E = 1.4426950408889634
import struct
def f2u(x): return struct.unpack("<I", struct.pack("<f", x))[0]

OPT = dict(stamp=False, mapping="xcd")

P_X, P_HRE, P_HIM, P_WG, P_WU, P_WD, P_OUT, P_DBG, P_WS = 32, 38, 40, 44, 46, 48, 50, 52, 54

def srd(k, d, p, size):
    k.e(f"s_mov_b32 s{d}, s{p}\ns_mov_b32 s{d+1}, s{p+1}\ns_mov_b32 s{d+2}, {size}\ns_mov_b32 s{d+3}, 0x20000")

def prologue(k):
    if OPT["stamp"]: k.e("s_memrealtime s[90:91]")
    k.e(f"""
    s_cmp_ge_u32 s2, 256
    s_cbranch_scc1 L_end_{k.name}
    s_load_dwordx16 s[32:47], s[0:1], 0
    s_load_dwordx8 s[48:55], s[0:1], 64
    v_lshrrev_b32 v1, 6, v0
    v_and_b32 v2, 31, v0
    v_readfirstlane_b32 s3, v1
    v_and_b32 v1, 63, v0
    v_bfe_u32 v3, v0, 5, 1
    v_lshlrev_b32 v4, 4, v1
    """)
    if OPT["mapping"] == "xcd":
        k.e("""
        s_and_b32 s16, s2, 7
        s_lshr_b32 s17, s2, 7
        s_lshl_b32 s17, s17, 3
        s_add_u32 s16, s16, s17
        s_bfe_u32 s17, s2, 0x40003
        """)
    elif OPT["mapping"] == "lin":
        k.e("s_lshr_b32 s16, s2, 4\ns_and_b32 s17, s2, 15")
    k.e("""
    s_mov_b32 s18, s16
    s_sub_u32 s19, 32, s16
    s_cmp_eq_u32 s16, 0
    s_cselect_b32 s19, 16, s19
    s_bitcmp1_b32 s3, 1
    s_cselect_b32 s20, s19, s18
    s_and_b32 s21, s3, 1
    s_lshl_b32 s21, s21, 5
    s_add_u32 s20, s20, s21
    s_waitcnt lgkmcnt(0)
    """)
    srd(k, 4, P_WS, WS_SIZE if not OPT["stamp"] else 0x10000000)

def epilogue(k, idx):
    if OPT["stamp"]:
        k.e("s_waitcnt vmcnt(0) lgkmcnt(0)")
        k.e(f"""
        s_memrealtime s[94:95]
        s_getreg_b32 s96, hwreg(HW_REG_XCC_ID)
        s_waitcnt lgkmcnt(0)
        v_mov_b32 v8, s90
        v_mov_b32 v9, s92
        v_mov_b32 v10, s94
        v_mov_b32 v11, s96
        s_lshl_b32 s21, s2, 2
        s_add_u32 s21, s21, s3
        s_lshl_b32 s21, s21, 4
        s_add_u32 s21, s21, {STAMP + idx*65536}
        v_mov_b32 v12, 0
        v_cmp_eq_u32 vcc, 0, v1
        s_and_saveexec_b64 s[22:23], vcc
        buffer_store_dwordx4 v[8:11], v12, s[4:7], s21 offen
        """)
    k.e(f"L_end_{k.name}:\ns_endpgm")

def midstamp(k):
    if OPT["stamp"]: k.e("s_memrealtime s[92:93]")

def dma(k, voff, srd_, soff_sgpr_or_imm, ldsbase_sgpr, ldsimm, tag, tmp=21):
    sg, im = soff_sgpr_or_imm
    k.vmroom()
    if sg is None:
        k.e(f"s_mov_b32 s{tmp}, {im}"); so = f"s{tmp}"
    elif im == 0: so = f"s{sg}"
    else:
        k.e(f"s_add_u32 s{tmp}, s{sg}, {im}"); so = f"s{tmp}"
    if ldsbase_sgpr is None: k.e(f"s_mov_b32 m0, {ldsimm}")
    else: k.e(f"s_add_u32 m0, s{ldsbase_sgpr}, {ldsimm}")
    k.e(f"buffer_load_dwordx4 v{voff}, s[{srd_}:{srd_+3}], {so} offen lds", tag)

def gload(k, dst, voff, srd_, sg, im, tag, n=4, tmp=21, flags=""):
    k.vmroom()
    suf = {4: "x4", 2: "x2", 1: ""}[n]
    if sg is not None and 0 <= im < 4096:
        so = f"s{sg}"; off = f" offset:{im}" if im else ""
    else:
        off = ""
        if sg is None: k.e(f"s_mov_b32 s{tmp}, {im}")
        else: k.e(f"s_add_u32 s{tmp}, s{sg}, {im}")
        so = f"s{tmp}"
    k.e(f"buffer_load_dword{suf} {dst}, v{voff}, s[{srd_}:{srd_+3}], {so} offen{off} {flags}", tag)

def gstore(k, src, voff, srd_, sg, im, n=4, tmp=21, flags="", tag="st"):
    k.vmroom()
    suf = {4: "x4", 2: "x2", 1: ""}[n]
    if sg is not None and 0 <= im < 4096:
        so = f"s{sg}"; off = f" offset:{im}" if im else ""
    else:
        off = ""
        if sg is None: k.e(f"s_mov_b32 s{tmp}, {im}")
        else: k.e(f"s_add_u32 s{tmp}, s{sg}, {im}")
        so = f"s{tmp}"
    k.e(f"buffer_store_dword{suf} {src}, v{voff}, s[{srd_}:{srd_+3}], {so} offen{off} {flags}", tag)

def half_sum(k, v, t0, t1):
    k.e(f"v_mov_b32 v{t0}, v{v}\nv_mov_b32 v{t1}, v{v}\nv_permlane32_swap_b32 v{t0}, v{t1}\nv_add_f32 v{v}, v{t0}, v{t1}")

def row_stats(k, vs, vq, vmean, vr, t0, t1):
    half_sum(k, vs, t0, t1); half_sum(k, vq, t0, t1)
    k.e(f"""
    v_mul_f32 v{vmean}, {f2u(1/640.):#x}, v{vs}
    v_mul_f32 v{t0}, {f2u(1/640.):#x}, v{vq}
    v_fma_f32 v{t0}, -v{vmean}, v{vmean}, v{t0}
    v_max_f32 v{t0}, 0, v{t0}
    v_add_f32 v{t0}, {f2u(1e-5):#x}, v{t0}
    v_rsq_f32 v{vr}, v{t0}
    """)

def p1(k, layer):
    k.c("---- P1 layer %d ----" % layer)
    A0, AH, AX = 5, 9, 13
    DV, XV = 17, 19
    SUM, SQ = 24, 26
    MC, MS, MN = 32, 40, 48
    ACA, ACB = 64, 80
    XF = 96
    k.e(f"""
    s_bitcmp1_b32 s3, 1
    s_cselect_b32 s8, s{P_HIM}, s{P_HRE}
    s_cselect_b32 s9, s{P_HIM+1}, s{P_HRE+1}
    s_mov_b32 s10, {640*640*2}
    s_mov_b32 s11, 0x20000
    s_and_b32 s22, s3, 1
    s_lshl_b32 s22, s22, 4             ; 16*(w&1)
    s_lshl_b32 s23, s17, 5             ; 32*et
    s_add_u32 s23, s23, s22
    v_lshrrev_b32 v28, 3, v1           ; lane/8
    v_and_b32 v29, 7, v1               ; lane%8
    """)
    for i in range(2):
        k.e(f"""
        v_add_u32 v30, {8*i}, v28          ; row_local
        v_add_u32 v31, s22, v30
        v_bfe_u32 v31, v31, 1, 3
        v_xor_b32 v31, v31, v29            ; chunk
        v_add_u32 v30, s23, v30            ; e
        """)
        if i == 0:
            k.e(f"""
            v_or_b32 v{DV+1}, s3, v30
            v_mov_b32 v{DV}, 320
            v_cmp_eq_u32 vcc, 0, v{DV+1}
            v_cndmask_b32 v30, v30, v{DV}, vcc
            """)
        k.e(f"v_mul_u32_u24 v30, 1280, v30\nv_lshl_add_u32 v{DV+i}, v31, 4, v30")
    k.e(f"s_lshl_b32 s24, s3, 11")
    if layer == 0:
        srd(k, 12, P_X, 2048*640*2)
        for i in range(4):
            k.e(f"""
            v_add_u32 v30, {8*i}, v28          ; l'
            v_bfe_u32 v31, v30, 1, 3
            v_xor_b32 v31, v31, v29
            v_lshl_add_u32 v30, v30, 6, s20
            v_mul_u32_u24 v30, 1280, v30
            v_lshl_add_u32 v{XV+i}, v31, 4, v30
            """)
        k.e(f"s_mul_i32 s25, s3, 20480\ns_add_u32 s25, s25, 81920")
    else:
        k.e(f"s_mul_i32 s25, s20, {40*1024}\ns_add_u32 s25, s25, {X2B}")
    def dft_piece(p):
        for i in range(2):
            dma(k, DV+i, 8, (None, p*128), 24, p*8192 + i*1024, ("d", p))
    def x_piece(p):
        if layer == 0:
            for i in range(4):
                dma(k, XV+i, 12, (None, p*128), 25, (p % 5)*4096 + i*1024, ("x", p))
        else:
            for i in range(4):
                kap = 4*p + i
                gload(k, vr(XF + 4*kap, 4), 4, 4, 25, kap*1024, ("x", p))
    if layer == 0:
        for p in range(5): x_piece(p); dft_piece(p)
        for p in range(5, 10): dft_piece(p)
    else:
        for p in range(10): x_piece(p); dft_piece(p)
    k.e(f"v_bfe_u32 v28, v2, 1, 3\nv_lshlrev_b32 v29, 7, v2")
    for j in range(4):
        k.e(f"""
        v_add_u32 v30, {2*j}, v3
        v_xor_b32 v30, v30, v28
        v_lshl_add_u32 v{A0+j}, v30, 4, v29
        v_add_u32 v{AH+j}, 0x10000, v{A0+j}
        """)
        if layer == 0: k.e(f"v_add_u32 v{AX+j}, s25, v{A0+j}")
    k.e(f"""
    v_cvt_f32_u32 v28, v2
    v_mul_f32 v28, {f2u(1/32.):#x}, v28       ; t1/32
    v_cvt_f32_u32 v29, v3
    v_mul_f32 v29, 4.0, v29
    v_mul_f32 v29, v29, v28                   ; 4h*t1/32
    """)
    for kp in range(2):
        for jp in range(4):
            for sub in range(2):
                j = 2*jp + sub
                s1 = 16*kp + 8*(j//4) + j % 4
                k.e(f"s_mov_b32 s21, {f2u(float(s1)):#x}")
                k.e(f"v_fma_f32 v{56+sub}, v28, s21, v29")
            k.e(f"v_cos_f32 v58, v56\nv_cos_f32 v59, v57\nv_sin_f32 v60, v56\nv_sin_f32 v61, v57")
            d = 4*kp + jp
            k.e(f"v_cvt_pk_bf16_f32 v{MC+d}, v58, v59\nv_cvt_pk_bf16_f32 v{MS+d}, v60, v61")
            k.e(f"v_xor_b32 v{MN+d}, 0x80008000, v{MC+d}")
    for v in (SUM, SUM+1, SQ, SQ+1): k.e(f"v_mov_b32 v{v}, 0")
    k.e("s_mov_b32 s26, 0x3f803f80")
    def reads(p):
        bs = (p % 2) * 32
        for i in range(4):
            if layer == 0:
                k.e(f"ds_read_b128 {vr(XF + (p%2)*16 + 4*i, 4)}, v{AX+i} offset:{(p%5)*4096}", ("r", p))
            for n in range(2):
                off = p*8192 + n*4096
                reg = A0 + i if off < 65536 else AH + i
                k.e(f"ds_read_b128 {ar(bs + 8*i + 4*n, 4)}, v{reg} offset:{off % 65536}", ("r", p))
    def mfmas(p):
        bs = (p % 2) * 32
        for i in range(4):
            kap = 4*p + i
            xf = XF + ((p % 2)*16 + 4*i if layer == 0 else 4*kap)
            for n, acc in ((0, ACA), (1, ACB)):
                c = "0" if kap == 0 else vr(acc, 16)
                k.e(f"v_mfma_f32_32x32x16_bf16 {vr(acc,16)}, {vr(xf,4)}, {ar(bs + 8*i + 4*n, 4)}, {c}")
                for q in range(2):
                    r_ = xf + 2*n + q
                    k.e(f"v_dot2c_f32_bf16 v{SUM+q}, s26, v{r_}")
                    k.e(f"v_dot2c_f32_bf16 v{SQ+q}, v{r_}, v{r_}")
    for p in range(10):
        k.wait(vm=[("d", p), ("x", p)])
        k.e("s_barrier")
        if p == 0: midstamp(k)
        reads(p)
        if p > 0:
            k.wait(lg=("r", p-1))
            if layer == 0 and p - 1 + 5 < 10: x_piece(p - 1 + 5)
            mfmas(p - 1)
    k.wait(lg=("r", 9))
    mfmas(9)
    k.e(f"v_add_f32 v{SUM}, v{SUM}, v{SUM+1}\nv_add_f32 v{SQ}, v{SQ}, v{SQ+1}")
    row_stats(k, SUM, SQ, 28, 29, 30, 31)
    k.e(f"""
    s_mul_i32 s25, s3, 20480
    s_add_u32 s25, s25, 81920
    v_lshl_add_u32 v30, v2, 2, s25
    v_lshl_add_u32 v31, v3, 4, s25
    ds_write_b32 v30, v29
    s_waitcnt lgkmcnt(0)
    """)
    RM = 96
    for q in range(4): k.e(f"ds_read_b128 {vr(RM+4*q,4)}, v31 offset:{32*q}", "rm")
    k.e("s_barrier")
    k.wait(lg="rm")
    PA, PB = 112, 120
    for acc, dst in ((ACA, PA), (ACB, PB)):
        for i in range(16): k.e(f"v_mul_f32 v{acc+i}, v{acc+i}, v{RM+i}")
        for i in range(8): k.e(f"v_cvt_pk_bf16_f32 v{dst+i}, v{acc+2*i}, v{acc+2*i+1}")
    VR_, VI_ = 128, 144
    k.e(f"""
    v_mfma_f32_32x32x16_bf16 {vr(VR_,16)}, {vr(MC,4)}, {vr(PA,4)}, 0
    v_mfma_f32_32x32x16_bf16 {vr(VI_,16)}, {vr(MS,4)}, {vr(PA,4)}, 0
    v_mfma_f32_32x32x16_bf16 {vr(VR_,16)}, {vr(MC+4,4)}, {vr(PA+4,4)}, {vr(VR_,16)}
    v_mfma_f32_32x32x16_bf16 {vr(VI_,16)}, {vr(MS+4,4)}, {vr(PA+4,4)}, {vr(VI_,16)}
    v_mfma_f32_32x32x16_bf16 {vr(VR_,16)}, {vr(MS,4)}, {vr(PB,4)}, {vr(VR_,16)}
    v_mfma_f32_32x32x16_bf16 {vr(VI_,16)}, {vr(MN,4)}, {vr(PB,4)}, {vr(VI_,16)}
    v_mfma_f32_32x32x16_bf16 {vr(VR_,16)}, {vr(MS+4,4)}, {vr(PB+4,4)}, {vr(VR_,16)}
    v_mfma_f32_32x32x16_bf16 {vr(VI_,16)}, {vr(MN+4,4)}, {vr(PB+4,4)}, {vr(VI_,16)}
    """)
    k.e(f"""
    s_lshl_b32 s21, s3, 2
    v_lshl_add_u32 v30, v2, 4, s21
    v_lshl_add_u32 v30, v3, 11, v30        ; + 4h*512
    s_lshl_b32 s22, s3, 12
    v_add_u32 v31, s22, v4
    s_mul_i32 s23, s16, 5120
    s_lshl_b32 s24, s17, 9
    s_add_u32 s23, s23, s24
    s_mul_i32 s24, s3, {8*81920}
    s_add_u32 s23, s23, s24
    s_add_u32 s23, s23, {VB[layer]}
    v_mul_u32_u24 v28, 81920, v3
    v_lshl_add_u32 v28, v2, 4, v28
    """)
    for i in range(16):
        k.e(f"v_cvt_pk_bf16_f32 v{160+i}, v{VR_+i}, v{VI_+i}")
        k.e(f"ds_write_b32 v30, v{160+i} offset:{(8*(i//4) + i%4)*512}")
    k.e("s_waitcnt lgkmcnt(0)\ns_barrier")
    for i in range(4): k.e(f"ds_read_b128 {vr(176+4*i,4)}, v31 offset:{i*1024}", ("o", i))
    for i in range(4):
        k.wait(lg=("o", i))
        gstore(k, vr(176+4*i, 4), 28, 4, 23, 2*i*81920)

def prep(k):
    k.c("---- prep ----")
    Lwd = k.label("Lwd"); Ldone = k.label("Lpd")
    k.e(f"""
    s_mul_i32 s22, s16, 6
    s_add_u32 s22, s22, s17
    s_sub_u32 s22, s22, 10                 ; unit u
    s_cmp_ge_u32 s22, 48
    s_cbranch_scc1 {Lwd}
    """)
    k.e(f"""
    s_cmp_ge_u32 s22, 24
    s_cselect_b32 s8, s{P_WU}, s{P_WG}
    s_cselect_b32 s9, s{P_WU+1}, s{P_WG+1}
    s_cselect_b32 s23, 1, 0                ; gu
    s_cselect_b32 s24, 24, 0
    s_sub_u32 s24, s22, s24                ; fp
    s_mov_b32 s10, {640*1536*2}
    s_mov_b32 s11, 0x20000
    v_lshrrev_b32 v5, 3, v1
    v_mul_u32_u24 v5, 3072, v5
    v_and_b32 v6, 7, v1
    v_lshl_add_u32 v5, v6, 4, v5
    s_mul_i32 s25, s3, {160*3072}
    s_lshl_b32 s26, s24, 7
    s_add_u32 s25, s25, s26
    s_mul_i32 s26, s3, 20480
    """)
    for i in range(20):
        dma(k, 5, 8, (25, i*8*3072), 26, i*1024, ("w", i//2))
    k.e(f"""
    v_bfe_u32 v6, v1, 2, 2                 ; i16/4
    v_lshl_add_u32 v6, v3, 2, v6           ; 4h + i16/4
    v_lshlrev_b32 v6, 7, v6
    v_bfe_u32 v7, v1, 4, 1
    v_lshl_add_u32 v6, v7, 5, v6
    v_and_b32 v7, 3, v1
    v_lshl_add_u32 v6, v7, 3, v6
    v_add_u32 v6, s26, v6
    s_mul_i32 s27, s24, {2*82*1024}
    s_lshl_b32 s28, s23, 10
    s_add_u32 s27, s27, s28
    s_add_u32 s27, s27, {WGU}
    s_mul_i32 s28, s3, {10*2048}
    s_add_u32 s28, s28, s27
    s_mov_b32 s29, 0x3f803f80
    v_mov_b32 v8, 0
    v_mov_b32 v9, 0
    """)
    for kl in range(10):
        k.wait(vm=("w", kl))
        for hf in range(2):
            d = 16 + ((kl % 2)*2 + hf)*4
            for sec in range(2):
                k.e(f"ds_read_b64_tr_b16 {vr(d+2*sec,2)}, v6 offset:{kl*2048 + sec*1024 + hf*64}", ("t", kl, hf))
        for hf in range(2):
            d = 16 + ((kl % 2)*2 + hf)*4
            k.wait(lg=("t", kl, hf))
            gstore(k, vr(d, 4), 4, 4, 28, hf*82*1024 + kl*2048)
            for q in range(4): k.e(f"v_dot2c_f32_bf16 v{8+hf}, s29, v{d+q}")
    half_sum(k, 8, 10, 11); half_sum(k, 9, 10, 11)
    k.e(f"""
    s_lshl_b32 s30, s3, 8
    s_add_u32 s30, s30, 81920
    v_lshl_add_u32 v10, v2, 2, s30
    ds_write_b32 v10, v8
    ds_write_b32 v10, v9 offset:128
    s_waitcnt lgkmcnt(0)
    s_barrier
    s_cmp_ge_u32 s3, 2
    s_cbranch_scc1 {Ldone}
    s_lshl_b32 s30, s3, 7
    s_add_u32 s30, s30, 81920
    v_lshl_add_u32 v10, v2, 2, s30
    ds_read_b32 v12, v10
    ds_read_b32 v13, v10 offset:256
    ds_read_b32 v14, v10 offset:512
    ds_read_b32 v15, v10 offset:768
    s_waitcnt lgkmcnt(0)
    v_add_f32 v12, v12, v13
    v_add_f32 v14, v14, v15
    v_add_f32 v12, v12, v14
    v_cvt_pk_bf16_f32 v16, v12, v12        ; (hi,hi)
    v_and_b32 v13, 0xffff0000, v16
    v_sub_f32 v13, v12, v13
    v_mov_b32 v14, 0
    v_cvt_pk_bf16_f32 v17, v13, v14        ; (lo,0)
    v_cmp_eq_u32 vcc, 0, v3
    v_mov_b32 v18, 0
    v_mov_b32 v19, 0
    v_cndmask_b32 v16, v14, v16, vcc
    v_cndmask_b32 v17, v14, v17, vcc
    s_mul_i32 s30, s3, {82*1024}
    s_add_u32 s30, s30, s27
    """)
    gstore(k, vr(16, 4), 4, 4, 30, 40*2048)
    k.e(f"s_branch {Ldone}")
    k.e(f"{Lwd}:")
    k.vm = []; k.lg = []
    k.e(f"s_sub_u32 s22, s22, 48")
    srd(k, 8, P_WD, 1536*640*2)
    k.e(f"""
    v_lshrrev_b32 v5, 2, v1
    v_mul_u32_u24 v5, 1280, v5
    v_and_b32 v6, 3, v1
    v_lshl_add_u32 v5, v6, 4, v5
    s_mul_i32 s25, s22, {32*1280}
    s_mul_i32 s26, s3, 320
    s_add_u32 s25, s25, s26
    s_mul_i32 s26, s3, 10240
    """)
    for cb in range(5):
        for rh in range(2):
            dma(k, 5, 8, (25, cb*64 + rh*16*1280), 26, cb*2048 + rh*1024, ("w", cb))
    k.e(f"""
    s_lshl_b32 s27, s22, 2
    s_add_u32 s27, s27, s3
    s_mul_i32 s27, s27, 3
    """)
    for i in range(3):
        Ls = k.label("Lm2")
        k.e(f"""
        s_add_u32 s28, s27, {i}
        s_cmp_ge_u32 s28, 512
        s_cbranch_scc1 {Ls}
        s_lshr_b32 s29, s28, 3                 ; rho
        s_and_b32 s30, s28, 7
        s_lshl_b32 s30, s30, 1                 ; 2 kappa
        v_lshl_add_u32 v8, v2, 6, s29          ; t
        v_add_u32 v9, s30, v3
        v_sub_u32 v10, 32, v9
        v_cmp_eq_u32 vcc, 0, v9
        v_mov_b32 v11, 16
        v_cndmask_b32 v10, v10, v11, vcc       ; tb'
        v_mul_u32_u24 v12, v8, v9
        v_mul_u32_u24 v14, v8, v10
        v_lshl_add_u32 v13, v8, 5, v12
        v_lshl_add_u32 v15, v8, 5, v14
        """)
        for q in range(4):
            k.e(f"""
            v_and_b32 v{12+q}, 2047, v{12+q}
            v_cvt_f32_u32 v{12+q}, v{12+q}
            v_mul_f32 v{12+q}, {f2u(1/2048.):#x}, v{12+q}
            v_cos_f32 v20, v{12+q}
            v_sin_f32 v21, -v{12+q}
            v_cvt_pk_bf16_f32 v{24+4*i+q}, v20, v21
            """)
        k.e(f"s_lshl_b32 s28, s28, 10\ns_add_u32 s28, s28, {M2}")
        k.e(f"buffer_store_dwordx4 {vr(24+4*i,4)}, v4, s[4:7], s28 offen")
        k.e(f"{Ls}:")
    k.e(f"""
    v_bfe_u32 v6, v1, 2, 2                 ; i16/4
    v_bfe_u32 v7, v1, 4, 1                 ; q%2
    v_lshl_add_u32 v6, v7, 2, v6
    v_lshl_add_u32 v6, v3, 4, v6           ; row = 16(q/2)+4(q%2)+i16/4
    v_lshlrev_b32 v6, 6, v6
    v_and_b32 v7, 3, v1
    v_lshl_add_u32 v6, v7, 3, v6
    v_add_u32 v6, s26, v6
    s_mul_i32 s27, s3, {2*48*5*1024}
    s_mul_i32 s28, s22, 5120
    s_add_u32 s27, s27, s28
    s_add_u32 s27, s27, {WD}
    s_waitcnt vmcnt(0)
    """)
    for i in range(10):
        d = 40 + 4*i
        for sec in range(2):
            k.e(f"ds_read_b64_tr_b16 {vr(d+2*sec,2)}, v6 offset:{(i//2)*2048 + (i%2)*32 + sec*512}", ("t", i))
        if i >= 4:
            k.wait(lg=("t", i-4)); ii = i - 4
            gstore(k, vr(40+4*ii, 4), 4, 4, 27, (ii//5)*48*5120 + (ii % 5)*1024)
    for ii in range(6, 10):
        k.wait(lg=("t", ii))
        gstore(k, vr(40+4*ii, 4), 4, 4, 27, (ii//5)*48*5120 + (ii % 5)*1024)
    k.e(f"{Ldone}:")

def p2(k, layer):
    k.c("---- P2 layer %d ----" % layer)
    Ldone = k.label("Lp2d")
    k.e(f"""
    s_lshl_b32 s22, s3, 4
    s_add_u32 s22, s22, s17                ; task
    s_cmp_ge_u32 s22, 40
    s_cbranch_scc1 {Ldone}
    s_cmp_ge_u32 s22, 20
    s_cselect_b32 s23, s19, s18            ; t1
    s_cselect_b32 s24, 20, 0
    s_sub_u32 s24, s22, s24                ; ct
    s_sub_u32 s25, 32, s23
    s_and_b32 s25, s25, 31
    s_cmp_ge_u32 s24, 10
    s_cselect_b32 s25, s25, s23            ; tv
    s_cselect_b32 s26, 0x80000000, 0
    s_cselect_b64 s[28:29], -1, 0
    s_lshl_b32 s27, s24, 5
    v_add_u32 v5, s27, v2                  ; column c
    v_sub_u32 v6, 640, v5
    v_cmp_eq_u32 vcc, 320, v6
    v_cndmask_b32 v6, v6, 0, vcc
    v_cndmask_b32 v6, v5, v6, s[28:29]     ; slot
    v_lshlrev_b32 v6, 4, v6
    v_mul_u32_u24 v7, 5120, v3
    v_add_u32 v6, v6, v7
    v_cmp_eq_u32 vcc, 0, v5
    v_mov_b32 v7, 0x7ff00000
    v_cndmask_b32 v6, v6, v7, vcc
    s_mul_i32 s25, s25, 81920
    s_add_u32 s25, s25, {VB[layer]}
    s_lshl_b32 s27, s23, 13
    s_add_u32 s27, s27, {M2}
    """)
    VF, MF, XR = 32, 64, 128
    for kap in range(8):
        gload(k, vr(VF+4*kap, 4), 6, 4, 25, kap*10240, ("v", kap))
        for n in range(2):
            gload(k, vr(MF + 32*n + 4*kap, 4), 4, 4, 27, n*32*8192 + kap*1024, ("m", kap))
    if layer == 0:
        srd(k, 8, P_X, 2048*640*2)
        k.e(f"""
        v_lshl_add_u32 v7, v2, 6, s23
        v_mul_u32_u24 v7, 1280, v7
        v_lshl_add_u32 v7, v3, 4, v7
        s_lshl_b32 s30, s24, 6
        """)
        for n in range(2):
            for kc in range(2):
                gload(k, vr(XR + 8*n + 4*kc, 4), 7, 8, 30, n*32*1280 + kc*32, "x")
    else:
        k.e(f"s_mul_i32 s30, s23, 40960\ns_lshl_b32 s31, s24, 11\ns_add_u32 s30, s30, s31\ns_add_u32 s30, s30, {X2B}")
        for n in range(2):
            for kc in range(2):
                gload(k, vr(XR + 8*n + 4*kc, 4), 4, 4, 30, n*32*40960 + kc*1024, "x")
    k.e(f"s_mul_i32 s30, s23, 40960\ns_lshl_b32 s31, s24, 11\ns_add_u32 s30, s30, s31\ns_add_u32 s30, s30, {X1B[layer]}")
    AC = 160
    for kap in range(8):
        k.wait(vm=[("v", kap), ("m", kap)])
        if kap == 0: midstamp(k)
        for q in range(4): k.e(f"v_xor_b32 v{VF+4*kap+q}, s26, v{VF+4*kap+q}")
        for n in range(2):
            c = "0" if kap == 0 else vr(AC+16*n, 16)
            k.e(f"v_mfma_f32_32x32x16_bf16 {vr(AC+16*n,16)}, {vr(VF+4*kap,4)}, {vr(MF+32*n+4*kap,4)}, {c}")
    k.wait(vm="x")
    for n in range(2):
        for kc in range(2):
            b = XR + 8*n + 4*kc
            k.e(f"v_permlane32_swap_b32 v{b}, v{b+2}\nv_permlane32_swap_b32 v{b+1}, v{b+3}")
    for n in range(2):
        for kc in range(2):
            b = XR + 8*n + 4*kc
            for q in range(4):
                a0 = AC + 16*n + 8*kc + 2*q
                k.e(f"""
                v_lshlrev_b32 v8, 16, v{b+q}
                v_and_b32 v9, 0xffff0000, v{b+q}
                v_add_f32 v8, v8, v{a0}
                v_add_f32 v9, v9, v{a0+1}
                v_cvt_pk_bf16_f32 v{b+q}, v8, v9
                """)
            gstore(k, vr(b, 4), 4, 4, 30, n*32*40960 + kc*1024)
    k.e(f"{Ldone}:")

def interleave(main, extra, start, per):
    out = []; e = list(extra)
    for i, m in enumerate(main):
        out.append(m)
        if i >= start:
            for _ in range(per):
                if e: out.append(e.pop(0))
    out += e
    return out

def p3(k, layer):
    k.c("---- P3 layer %d ----" % layer)
    XF = 96; AUG = 24
    SUM, SQ = 16, 18
    MEAN, RS, RN = 20, 21, 22
    ACC = [32, 64]
    NF = 246; CAP = 152; RA = 6; NB = 8
    k.e(f"""
    s_mul_i32 s22, s20, 40960
    s_add_u32 s22, s22, {X1B[layer]}
    s_mul_i32 s23, s17, {246*1024}
    s_lshl_b32 s24, s3, 10
    s_add_u32 s23, s23, s24
    s_add_u32 s23, s23, {WGU}
    """)
    issued = [0]
    def wgroup():
        n4 = issued[0]; issued[0] += 1
        last = min(4*n4 + 3, NF - 1)
        dma(k, 4, 4, (23, n4*4096), 24, (4*n4 % CAP)*1024, ("w", n4))
    NG = (NF + 3)//4
    for i in range(20):
        for q in range(2):
            kap = 2*i + q
            gload(k, vr(XF+4*kap, 4), 4, 4, 22, kap*1024, ("x", kap))
        wgroup()
    wgroup()
    for v in (SUM, SUM+1, SQ, SQ+1): k.e(f"v_mov_b32 v{v}, 0")
    k.e(f"""
    s_mov_b32 s26, 0x3f803f80
    v_add_u32 v5, 0x10000, v4
    v_add_u32 v6, 0x20000, v4
    v_bfe_u32 v7, v1, 4, 1
    v_mul_u32_u24 v7, {48*1024}, v7
    v_and_b32 v8, 15, v1
    v_lshl_add_u32 v7, v8, 4, v7
    v_lshl_add_u32 v7, v3, 8, v7
    s_mul_i32 s27, s20, {2*48*1024}
    s_mul_i32 s28, s17, 3072
    s_add_u32 s27, s27, s28
    s_add_u32 s27, s27, {HB[layer]}
    """)
    stages = [0, 8, 20, 32, 44, 56, 68, 84, 112, 140, 168, 196, 224]
    def rd(n):
        off = (n % CAP)*1024
        reg = 4 + off // 65536
        k.e(f"ds_read_b128 {ar(4*(n % NB), 4)}, v{reg} offset:{off % 65536}", ("r", n))
    def pre_read(n):
        if n in stages:
            nxt = min([s for s in stages if s > n] + [NF])
            assert issued[0] >= (nxt + 3)//4, (n, nxt, issued)
            k.wait(vm=[("w", q) for q in range((nxt + 3)//4)])
            k.e("s_barrier")
            if n == 0: midstamp(k)
            free_upto = n - RA - 1 + CAP
            return free_upto
        return None
    def epi(ft):
        g = ACC[ft % 2]; u = g + 16; L = []
        T = 8
        for i in range(16):
            t = T + (i % 4)
            L += [f"v_mul_f32 v{g+i}, v{g+i}, v{RN}", f"v_exp_f32 v{g+i}, v{g+i}", f"v_mul_f32 v{u+i}, v{u+i}, v{RS}"]
        M = []
        for i in range(16):
            M += [f"v_add_f32 v{g+i}, 1.0, v{g+i}", f"v_rcp_f32 v{g+i}, v{g+i}"]
        N = []
        for i in range(16):
            N += [f"v_mul_f32 v{u+i}, v{u+i}, v{g+i}"]
            if i % 2 == 1: N += [f"v_cvt_pk_bf16_f32 v{g + i//2}, v{u+i-1}, v{u+i}"]
            if i % 8 == 7: N += [("st", ft, i//8)]
        return L + M + N
    def emit_extra(x):
        if isinstance(x, tuple):
            _, ft, ab = x
            gstore(k, vr(ACC[ft % 2] + 4*ab, 4), 7, 4, 27, ft*1024 + ab*512, tmp=29)
        else: k.e(x)
    free = CAP - 1
    pend = []
    for n in range(RA):
        f = pre_read(n); free = f if f is not None else free
        rd(n)
    for n in range(NF):
        ft, rem = divmod(n, 82); kap, gu = divmod(rem, 2)
        if n + RA < NF:
            f = pre_read(n + RA); free = f if f is not None else free
            rd(n + RA)
        if issued[0] < NG and 4*issued[0] + 3 <= free and len(k.vm) < 60 and n % 2 == 0:
            wgroup()
        if rem == 0 and ft > 0: pend = pend + epi(ft - 1)
        if ft == 0 and kap < 40 and gu == 0: k.wait(vm=("x", kap))
        if ft == 0 and kap == 40 and gu == 0:
            k.e(f"v_add_f32 v{SUM}, v{SUM}, v{SUM+1}\nv_add_f32 v{SQ}, v{SQ}, v{SQ+1}")
            row_stats(k, SUM, SQ, MEAN, RS, 8, 9)
            k.e(f"""
            v_mul_f32 v{RN}, {f2u(-LOG2E):#x}, v{RS}
            v_sub_f32 v8, 0, v{MEAN}
            v_cvt_pk_bf16_f32 v9, v8, v8
            v_and_b32 v10, 0xffff0000, v9
            v_sub_f32 v10, v8, v10
            v_cvt_pk_bf16_f32 v10, v8, v10
            v_and_b32 v9, 0xffff, v9               ; (hi, 0)
            v_cmp_eq_u32 vcc, 0, v3
            v_mov_b32 v{AUG+2}, 0
            v_mov_b32 v{AUG+3}, 0
            v_cndmask_b32 v{AUG}, v{AUG+2}, v10, vcc
            v_cndmask_b32 v{AUG+1}, v{AUG+2}, v9, vcc
            """)
        k.wait(lg=("r", n))
        acc = ACC[ft % 2] + 16*gu
        xf = XF + 4*kap if kap < 40 else AUG
        c = "0" if kap == 0 else vr(acc, 16)
        k.e(f"v_mfma_f32_32x32x16_bf16 {vr(acc,16)}, {ar(4*(n % NB),4)}, {vr(xf,4)}, {c}")
        if ft == 0 and kap < 40:
            for q in range(2):
                r_ = xf + 2*gu + q
                k.e(f"v_dot2c_f32_bf16 v{SUM+q}, s26, v{r_}")
                k.e(f"v_dot2c_f32_bf16 v{SQ+q}, v{r_}, v{r_}")
        elif rem >= 4:
            for _ in range(2):
                if pend: emit_extra(pend.pop(0))
    assert issued[0] == NG, issued
    assert not pend
    for x in epi(2): emit_extra(x)

def p4(k, layer):
    k.c("---- P4 layer %d ----" % layer)
    ACC = 32; NS = 7
    k.e(f"""
    s_lshr_b32 s22, s17, 3                 ; half
    s_and_b32 s23, s17, 7                  ; cs
    s_cmp_eq_u32 s22, 0
    s_cselect_b32 s24, s18, s19
    s_mul_i32 s25, s23, {48*5120}
    s_mul_i32 s26, s3, {12*5120}
    s_add_u32 s25, s25, s26
    s_add_u32 s25, s25, {WD}
    s_mul_i32 s26, s24, {2*48*1024}
    s_mul_i32 s27, s3, {12*1024}
    s_add_u32 s26, s26, s27
    s_add_u32 s26, s26, {HB[layer]}
    """)
    for i in range(4):
        k.e(f"""
        s_xor_b32 s27, s3, {i}
        s_lshr_b32 s28, s27, 1
        s_lshl_b32 s28, s28, 6
        s_and_b32 s27, s27, 1
        s_add_u32 s27, s27, s28
        s_mul_i32 s27, s27, {48*1024}
        s_add_u32 s{60+i}, s27, s26
        """)
    order = [3*p + j for j in range(3) for p in range(4)]
    def loads(idx):
        F = order[idx]; b = (idx % NS)*36
        for i in range(4): gload(k, ar(b + 4*i, 4), 4, 4, 60+i, F*1024, ("f", idx))
        for mt in range(5): gload(k, ar(b + 16 + 4*mt, 4), 4, 4, 25, F*5120 + mt*1024, ("f", idx))
    for idx in range(6): loads(idx)
    k.e(f"""
    s_lshr_b32 s27, s3, 1
    s_lshl_b32 s27, s27, 5
    s_add_u32 s27, s27, s24                ; rho
    s_and_b32 s28, s3, 1
    s_lshl_b32 s28, s28, 4
    v_and_b32 v5, 15, v1
    v_add_u32 v5, s28, v5                  ; l
    v_bfe_u32 v6, v1, 4, 1                 ; q%2
    v_lshlrev_b32 v7, 4, v5
    v_lshl_add_u32 v8, v6, 9, v7
    v_lshl_add_u32 v8, v3, 3, v8
    s_mul_i32 s29, s27, 40960
    s_mul_i32 s30, s23, 5120
    s_add_u32 s29, s29, s30
    s_add_u32 s30, s29, {X1B[layer]}
    """)
    for mt in range(5): gload(k, vr(112 + 2*mt, 2), 8, 4, 30, mt*1024, "res", n=2)
    if layer == 0:
        k.e(f"""
        v_lshl_add_u32 v9, v3, 9, v7
        v_lshl_add_u32 v9, v6, 3, v9
        s_add_u32 s30, s29, {X2B}
        """)
    else:
        srd(k, 8, P_OUT, 2048*640*2)
        k.e(f"""
        v_lshl_add_u32 v9, v5, 6, s27
        v_mul_u32_u24 v9, 1280, v9
        v_lshrrev_b32 v10, 4, v1
        v_lshl_add_u32 v9, v10, 3, v9
        s_mul_i32 s30, s23, 160
        """)
    for i in range(1, 4):
        k.e(f"s_xor_b32 s27, s3, {i}\ns_mul_i32 s27, s27, 15360\nv_add_u32 v{10+i}, s27, v4")
    k.e(f"s_mul_i32 s27, s3, 15360\nv_add_u32 v10, s27, v4")
    for idx in range(12):
        k.wait(vm=("f", idx))
        if idx == 0: midstamp(k)
        b = (idx % NS)*36
        if idx + 6 < 12: loads(idx + 6)
        for i in (1, 2, 3, 0):
            for mt in range(5):
                acc = ACC + (i*5 + mt)*4
                c = "0" if idx == 0 else vr(acc, 4)
                k.e(f"v_mfma_f32_16x16x32_bf16 {vr(acc,4)}, {ar(b+16+4*mt,4)}, {ar(b+4*i,4)}, {c}")
    for i in range(1, 4):
        for mt in range(5):
            k.e(f"ds_write_b128 v{10+i}, {vr(ACC+(i*5+mt)*4,4)} offset:{(i-1)*5120 + mt*1024}")
    k.e("s_waitcnt lgkmcnt(0)\ns_barrier")
    RD = 128
    for mt in range(5):
        for i in range(3): k.e(f"ds_read_b128 {vr(RD + (mt*3+i)*4, 4)}, v10 offset:{i*5120 + mt*1024}", ("p", mt))
    k.wait(vm="res")
    for mt in range(5):
        k.wait(lg=("p", mt))
        a = ACC + 4*mt; r = RD + mt*12
        for q in range(4):
            k.e(f"v_add_f32 v{a+q}, v{a+q}, v{r+q}\nv_add_f32 v{r+4+q}, v{r+4+q}, v{r+8+q}")
        for q in range(2):
            k.e(f"v_lshlrev_b32 v{r+2*q}, 16, v{112+2*mt+q}\nv_and_b32 v{r+2*q+1}, 0xffff0000, v{112+2*mt+q}")
        for q in range(4):
            k.e(f"v_add_f32 v{a+q}, v{a+q}, v{r+4+q}\nv_add_f32 v{a+q}, v{a+q}, v{r+q}")
        k.e(f"v_cvt_pk_bf16_f32 v{112+2*mt}, v{a}, v{a+1}\nv_cvt_pk_bf16_f32 v{113+2*mt}, v{a+2}, v{a+3}")
        if layer == 0: gstore(k, vr(112+2*mt, 2), 9, 4, 30, mt*1024, n=2)
        else: gstore(k, vr(112+2*mt, 2), 9, 8, 30, mt*32, n=2)

def make_multi():
    ks = []; ls = []
    idx = 0
    for layer in range(2):
        k = K(f"p1l{layer}_kernel"); k.nv = 256; k.na = 64
        prologue(k)
        if layer == 0:
            k.e(f"s_cmp_ge_u32 s17, 10\ns_cbranch_scc1 L_prep")
            p1(k, 0)
            k.e("s_branch L_p1_done\nL_prep:")
            k.vm = []; k.lg = []
            midstamp(k)
            prep(k)
            k.e("L_p1_done:")
        else:
            k.e(f"s_cmp_ge_u32 s17, 10\ns_cbranch_scc1 L_end_{k.name}")
            p1(k, 1)
        epilogue(k, idx); idx += 1
        ks.append(k); ls.append((k, 256, 256, 163840))
        k = K(f"p2l{layer}_kernel"); k.nv = 192; k.na = 0
        prologue(k); midstamp(k); p2(k, layer); epilogue(k, idx); idx += 1
        ks.append(k); ls.append((k, 256, 256, 0))
        k = K(f"p3l{layer}_kernel"); k.nv = 256; k.na = 32
        prologue(k); p3(k, layer); epilogue(k, idx); idx += 1
        ks.append(k); ls.append((k, 256, 256, 155648))
        k = K(f"p4l{layer}_kernel"); k.nv = 192; k.na = 252
        prologue(k); p4(k, layer); epilogue(k, idx); idx += 1
        ks.append(k); ls.append((k, 256, 256, 61440))
    return ks, ls

HEADER = """FNet mixing + GLU, two interleaved layer pairs. Generated by gen/gen.py (hand-written generator).
Kernarg: in[0..8], out, debug, ws (8-byte pointers)."""

if __name__ == "__main__":
    out = sys.argv[1]
    for a in sys.argv[2:]:
        key, val = a.split("=")
        OPT[key] = {"True": True, "False": False}.get(val, val)
    ks, ls = make_multi()
    open(out, "w").write(build_file(ks, ls, HEADER))
    for k in ks: print(k.name, "lines", len(k.lines), "nops", k.nnop, "maxv", k.maxv, "maxa", getattr(k, "maxa", -1), "maxs", k.maxs)
```

```python
import sys, math
from asmlib import *

WGU = 0x0
WD  = 0x400000
M2  = 0x600000
VB  = [0x700000, 0xA00000]
X1B = [0xD00000, 0x1000000]
HB  = [0x1300000, 0x1900000]
X2B = 0x1F00000
FLG = 0x2200000
WS_SIZE = 0x2400000
STAMP = 200 << 20
LOG2E = 1.4426950408889634
import struct
def f2u(x): return struct.unpack("<I", struct.pack("<f", x))[0]

OPT = dict(stamp=False, mapping="xcd")

P_X, P_HRE, P_HIM, P_WG, P_WU, P_WD, P_OUT, P_DBG, P_WS = 32, 38, 40, 44, 46, 48, 50, 52, 54

def TS(): return "s_memtime" if OPT["stamp"] == "cyc" else "s_memrealtime"

def srd(k, d, p, size):
    k.e(f"s_mov_b32 s{d}, s{p}\ns_mov_b32 s{d+1}, s{p+1}\ns_mov_b32 s{d+2}, {size}\ns_mov_b32 s{d+3}, 0x20000")

def prologue(k):
    k.nst = 0
    if OPT["stamp"]:
        k.e(f"{TS()} s[68:69]")
        for i in range(1, 16): k.e(f"s_mov_b32 s{68+2*i}, 0")
    k.e(f"""
    s_cmp_ge_u32 s2, 256
    s_cbranch_scc1 L_end_{k.name}
    s_load_dwordx16 s[32:47], s[0:1], 0
    s_load_dwordx8 s[48:55], s[0:1], 64
    v_lshrrev_b32 v1, 6, v0
    v_and_b32 v2, 31, v0
    v_readfirstlane_b32 s3, v1
    v_and_b32 v1, 63, v0
    v_bfe_u32 v3, v0, 5, 1
    v_lshlrev_b32 v4, 4, v1
    """)
    if OPT["mapping"] == "xcd":
        k.e("""
        s_and_b32 s16, s2, 7
        s_lshr_b32 s17, s2, 7
        s_lshl_b32 s17, s17, 3
        s_add_u32 s16, s16, s17
        s_bfe_u32 s17, s2, 0x40003
        """)
    elif OPT["mapping"] == "xcd2":
        k.e("""
        s_bfe_u32 s16, s2, 0x20001
        s_lshl_b32 s16, s16, 2
        s_lshr_b32 s17, s2, 6
        s_add_u32 s16, s16, s17
        s_and_b32 s17, s2, 1
        s_lshl_b32 s17, s17, 3
        s_bfe_u32 s18, s2, 0x30003
        s_add_u32 s17, s17, s18
        """)
    elif OPT["mapping"] == "lin":
        k.e("s_lshr_b32 s16, s2, 4\ns_and_b32 s17, s2, 15")
    k.e("""
    s_mov_b32 s18, s16
    s_sub_u32 s19, 32, s16
    s_cmp_eq_u32 s16, 0
    s_cselect_b32 s19, 16, s19
    s_bitcmp1_b32 s3, 1
    s_cselect_b32 s20, s19, s18
    s_and_b32 s21, s3, 1
    s_lshl_b32 s21, s21, 5
    s_add_u32 s20, s20, s21
    s_waitcnt lgkmcnt(0)
    """)
    srd(k, 4, P_WS, WS_SIZE if not OPT["stamp"] else 0x10000000)

def epilogue(k, idx):
    if OPT["stamp"]:
        k.e("s_waitcnt vmcnt(0) lgkmcnt(0)")
        k.e(f"{TS()} s[98:99]\ns_waitcnt lgkmcnt(0)")
        for i in range(16): k.e(f"v_mov_b32 v{8+i}, s{68+2*i}")
        k.e(f"""
        s_lshl_b32 s21, s2, 2
        s_add_u32 s21, s21, s3
        s_lshl_b32 s21, s21, 6
        s_add_u32 s21, s21, {STAMP + idx*65536}
        v_mov_b32 v24, 0
        v_cmp_eq_u32 vcc, 0, v1
        s_and_saveexec_b64 s[22:23], vcc
        """)
        for i in range(4): k.e(f"buffer_store_dwordx4 v[{8+4*i}:{11+4*i}], v24, s[4:7], s21 offen offset:{16*i}")
    k.e(f"L_end_{k.name}:\ns_endpgm")

def midstamp(k, name=None):
    if OPT["stamp"]:
        k.nst += 1; i = k.nst
        assert 1 <= i <= 14, i
        k.stnames = getattr(k, "stnames", []) + [name or str(i)]
        k.e(f"{TS()} s[{68+2*i}:{69+2*i}]")

def dma(k, voff, srd_, soff_sgpr_or_imm, ldsbase_sgpr, ldsimm, tag, tmp=21):
    sg, im = soff_sgpr_or_imm
    k.vmroom()
    if sg is None:
        k.e(f"s_mov_b32 s{tmp}, {im}"); so = f"s{tmp}"
    elif im == 0: so = f"s{sg}"
    else:
        k.e(f"s_add_u32 s{tmp}, s{sg}, {im}"); so = f"s{tmp}"
    if ldsbase_sgpr is None: k.e(f"s_mov_b32 m0, {ldsimm}")
    else: k.e(f"s_add_u32 m0, s{ldsbase_sgpr}, {ldsimm}")
    k.e(f"buffer_load_dwordx4 v{voff}, s[{srd_}:{srd_+3}], {so} offen lds", tag)

def gload(k, dst, voff, srd_, sg, im, tag, n=4, tmp=21, flags=""):
    k.vmroom()
    suf = {4: "x4", 2: "x2", 1: ""}[n]
    if sg is not None and 0 <= im < 4096:
        so = f"s{sg}"; off = f" offset:{im}" if im else ""
    else:
        off = ""
        if sg is None: k.e(f"s_mov_b32 s{tmp}, {im}")
        else: k.e(f"s_add_u32 s{tmp}, s{sg}, {im}")
        so = f"s{tmp}"
    k.e(f"buffer_load_dword{suf} {dst}, v{voff}, s[{srd_}:{srd_+3}], {so} offen{off} {flags}", tag)

def gstore(k, src, voff, srd_, sg, im, n=4, tmp=21, flags="", tag="st"):
    k.vmroom()
    suf = {4: "x4", 2: "x2", 1: ""}[n]
    if sg is not None and 0 <= im < 4096:
        so = f"s{sg}"; off = f" offset:{im}" if im else ""
    else:
        off = ""
        if sg is None: k.e(f"s_mov_b32 s{tmp}, {im}")
        else: k.e(f"s_add_u32 s{tmp}, s{sg}, {im}")
        so = f"s{tmp}"
    k.e(f"buffer_store_dword{suf} {src}, v{voff}, s[{srd_}:{srd_+3}], {so} offen{off} {flags}", tag)

def half_sum(k, v, t0, t1):
    k.e(f"v_mov_b32 v{t0}, v{v}\nv_mov_b32 v{t1}, v{v}\nv_permlane32_swap_b32 v{t0}, v{t1}\nv_add_f32 v{v}, v{t0}, v{t1}")

def row_stats(k, vs, vq, vmean, vr, t0, t1):
    half_sum(k, vs, t0, t1); half_sum(k, vq, t0, t1)
    k.e(f"""
    v_mul_f32 v{vmean}, {f2u(1/640.):#x}, v{vs}
    v_mul_f32 v{t0}, {f2u(1/640.):#x}, v{vq}
    v_fma_f32 v{t0}, -v{vmean}, v{vmean}, v{t0}
    v_max_f32 v{t0}, 0, v{t0}
    v_add_f32 v{t0}, {f2u(1e-5):#x}, v{t0}
    v_rsq_f32 v{vr}, v{t0}
    """)

def p1(k, layer):
    k.c("---- P1 layer %d ----" % layer)
    A0, AH, AX = 5, 9, 13
    DV, XV = 17, 19
    SUM, SQ = 24, 26
    MC, MS, MN = 32, 40, 48
    ACA, ACB = 64, 80
    XF = 96
    k.e(f"""
    s_bitcmp1_b32 s3, 1
    s_cselect_b32 s8, s{P_HIM}, s{P_HRE}
    s_cselect_b32 s9, s{P_HIM+1}, s{P_HRE+1}
    s_mov_b32 s10, {640*640*2}
    s_mov_b32 s11, 0x20000
    s_and_b32 s22, s3, 1
    s_lshl_b32 s22, s22, 4             ; 16*(w&1)
    s_lshl_b32 s23, s17, 5             ; 32*et
    s_add_u32 s23, s23, s22
    v_lshrrev_b32 v28, 3, v1           ; lane/8
    v_and_b32 v29, 7, v1               ; lane%8
    """)
    for i in range(2):
        k.e(f"""
        v_add_u32 v30, {8*i}, v28          ; row_local
        v_add_u32 v31, s22, v30
        v_bfe_u32 v31, v31, 1, 3
        v_xor_b32 v31, v31, v29            ; chunk
        v_add_u32 v30, s23, v30            ; e
        """)
        if i == 0:
            k.e(f"""
            v_or_b32 v{DV+1}, s3, v30
            v_mov_b32 v{DV}, 320
            v_cmp_eq_u32 vcc, 0, v{DV+1}
            v_cndmask_b32 v30, v30, v{DV}, vcc
            """)
        k.e(f"v_mul_u32_u24 v30, 1280, v30\nv_lshl_add_u32 v{DV+i}, v31, 4, v30")
    k.e(f"s_lshl_b32 s24, s3, 11")
    if layer == 0:
        srd(k, 12, P_X, 2048*640*2)
        for i in range(4):
            k.e(f"""
            v_add_u32 v30, {8*i}, v28          ; l'
            v_bfe_u32 v31, v30, 1, 3
            v_xor_b32 v31, v31, v29
            v_lshl_add_u32 v30, v30, 6, s20
            v_mul_u32_u24 v30, 1280, v30
            v_lshl_add_u32 v{XV+i}, v31, 4, v30
            """)
        k.e(f"s_mul_i32 s25, s3, 20480\ns_add_u32 s25, s25, 81920")
    else:
        k.e(f"s_mul_i32 s25, s20, {40*1024}\ns_add_u32 s25, s25, {X2B}")
    def dft_piece(p):
        for i in range(2):
            dma(k, DV+i, 8, (None, p*128), 24, p*8192 + i*1024, ("d", p))
    def x_piece(p):
        if layer == 0:
            for i in range(4):
                dma(k, XV+i, 12, (None, p*128), 25, (p % 5)*4096 + i*1024, ("x", p))
        else:
            for i in range(4):
                kap = 4*p + i
                gload(k, vr(XF + 4*kap, 4), 4, 4, 25, kap*1024, ("x", p))
    if layer == 0:
        for p in range(5): x_piece(p); dft_piece(p)
        for p in range(5, 10): dft_piece(p)
    else:
        for p in range(10): x_piece(p); dft_piece(p)
    midstamp(k)
    k.e(f"v_bfe_u32 v28, v2, 1, 3\nv_lshlrev_b32 v29, 7, v2")
    for j in range(4):
        k.e(f"""
        v_add_u32 v30, {2*j}, v3
        v_xor_b32 v30, v30, v28
        v_lshl_add_u32 v{A0+j}, v30, 4, v29
        v_add_u32 v{AH+j}, 0x10000, v{A0+j}
        """)
        if layer == 0: k.e(f"v_add_u32 v{AX+j}, s25, v{A0+j}")
    k.e(f"""
    v_cvt_f32_u32 v28, v2
    v_mul_f32 v28, {f2u(1/32.):#x}, v28       ; t1/32
    v_cvt_f32_u32 v29, v3
    v_mul_f32 v29, 4.0, v29
    v_mul_f32 v29, v29, v28                   ; 4h*t1/32
    """)
    for kp in range(2):
        for jp in range(4):
            for sub in range(2):
                j = 2*jp + sub
                s1 = 16*kp + 8*(j//4) + j % 4
                k.e(f"s_mov_b32 s21, {f2u(float(s1)):#x}")
                k.e(f"v_fma_f32 v{56+sub}, v28, s21, v29")
            k.e(f"v_cos_f32 v58, v56\nv_cos_f32 v59, v57\nv_sin_f32 v60, v56\nv_sin_f32 v61, v57")
            d = 4*kp + jp
            k.e(f"v_cvt_pk_bf16_f32 v{MC+d}, v58, v59\nv_cvt_pk_bf16_f32 v{MS+d}, v60, v61")
            k.e(f"v_xor_b32 v{MN+d}, 0x80008000, v{MC+d}")
    for v in (SUM, SUM+1, SQ, SQ+1): k.e(f"v_mov_b32 v{v}, 0")
    k.e("s_mov_b32 s26, 0x3f803f80")
    midstamp(k)
    def reads(p):
        bs = (p % 2) * 32
        for i in range(4):
            if layer == 0:
                k.e(f"ds_read_b128 {vr(XF + (p%2)*16 + 4*i, 4)}, v{AX+i} offset:{(p%5)*4096}", ("r", p))
            for n in range(2):
                off = p*8192 + n*4096
                reg = A0 + i if off < 65536 else AH + i
                k.e(f"ds_read_b128 {ar(bs + 8*i + 4*n, 4)}, v{reg} offset:{off % 65536}", ("r", p))
    def mfmas(p):
        bs = (p % 2) * 32
        for i in range(4):
            kap = 4*p + i
            xf = XF + ((p % 2)*16 + 4*i if layer == 0 else 4*kap)
            for n, acc in ((0, ACA), (1, ACB)):
                c = "0" if kap == 0 else vr(acc, 16)
                k.e(f"v_mfma_f32_32x32x16_bf16 {vr(acc,16)}, {vr(xf,4)}, {ar(bs + 8*i + 4*n, 4)}, {c}")
                for q in range(2):
                    r_ = xf + 2*n + q
                    k.e(f"v_dot2c_f32_bf16 v{SUM+q}, s26, v{r_}")
                    k.e(f"v_dot2c_f32_bf16 v{SQ+q}, v{r_}, v{r_}")
    for p in range(10):
        k.wait(vm=[("d", p), ("x", p)])
        k.e("s_barrier")
        if p == 0: midstamp(k)
        reads(p)
        if p > 0:
            k.wait(lg=("r", p-1))
            if layer == 0 and p - 1 + 5 < 10: x_piece(p - 1 + 5)
            mfmas(p - 1)
    k.wait(lg=("r", 9))
    mfmas(9)
    midstamp(k)
    k.e(f"v_add_f32 v{SUM}, v{SUM}, v{SUM+1}\nv_add_f32 v{SQ}, v{SQ}, v{SQ+1}")
    row_stats(k, SUM, SQ, 28, 29, 30, 31)
    k.e(f"""
    s_mul_i32 s25, s3, 20480
    s_add_u32 s25, s25, 81920
    v_lshl_add_u32 v30, v2, 2, s25
    v_lshl_add_u32 v31, v3, 4, s25
    ds_write_b32 v30, v29
    s_waitcnt lgkmcnt(0)
    """)
    RM = 96
    for q in range(4): k.e(f"ds_read_b128 {vr(RM+4*q,4)}, v31 offset:{32*q}", "rm")
    k.e("s_barrier")
    k.wait(lg="rm")
    PA, PB = 112, 120
    for acc, dst in ((ACA, PA), (ACB, PB)):
        for i in range(16): k.e(f"v_mul_f32 v{acc+i}, v{acc+i}, v{RM+i}")
        for i in range(8): k.e(f"v_cvt_pk_bf16_f32 v{dst+i}, v{acc+2*i}, v{acc+2*i+1}")
    VR_, VI_ = 128, 144
    k.e(f"""
    v_mfma_f32_32x32x16_bf16 {vr(VR_,16)}, {vr(MC,4)}, {vr(PA,4)}, 0
    v_mfma_f32_32x32x16_bf16 {vr(VI_,16)}, {vr(MS,4)}, {vr(PA,4)}, 0
    v_mfma_f32_32x32x16_bf16 {vr(VR_,16)}, {vr(MC+4,4)}, {vr(PA+4,4)}, {vr(VR_,16)}
    v_mfma_f32_32x32x16_bf16 {vr(VI_,16)}, {vr(MS+4,4)}, {vr(PA+4,4)}, {vr(VI_,16)}
    v_mfma_f32_32x32x16_bf16 {vr(VR_,16)}, {vr(MS,4)}, {vr(PB,4)}, {vr(VR_,16)}
    v_mfma_f32_32x32x16_bf16 {vr(VI_,16)}, {vr(MN,4)}, {vr(PB,4)}, {vr(VI_,16)}
    v_mfma_f32_32x32x16_bf16 {vr(VR_,16)}, {vr(MS+4,4)}, {vr(PB+4,4)}, {vr(VR_,16)}
    v_mfma_f32_32x32x16_bf16 {vr(VI_,16)}, {vr(MN+4,4)}, {vr(PB+4,4)}, {vr(VI_,16)}
    """)
    midstamp(k)
    k.e(f"""
    s_lshl_b32 s21, s3, 2
    v_lshl_add_u32 v30, v2, 4, s21
    v_lshl_add_u32 v30, v3, 11, v30        ; + 4h*512
    s_lshl_b32 s22, s3, 12
    v_add_u32 v31, s22, v4
    s_mul_i32 s23, s16, 5120
    s_lshl_b32 s24, s17, 9
    s_add_u32 s23, s23, s24
    s_mul_i32 s24, s3, {8*81920}
    s_add_u32 s23, s23, s24
    s_add_u32 s23, s23, {VB[layer]}
    v_mul_u32_u24 v28, 81920, v3
    v_lshl_add_u32 v28, v2, 4, v28
    """)
    for i in range(16):
        k.e(f"v_cvt_pk_bf16_f32 v{160+i}, v{VR_+i}, v{VI_+i}")
        k.e(f"ds_write_b32 v30, v{160+i} offset:{(8*(i//4) + i%4)*512}")
    k.e("s_waitcnt lgkmcnt(0)\ns_barrier")
    for i in range(4): k.e(f"ds_read_b128 {vr(176+4*i,4)}, v31 offset:{i*1024}", ("o", i))
    for i in range(4):
        k.wait(lg=("o", i))
        gstore(k, vr(176+4*i, 4), 28, 4, 23, 2*i*81920)

def prep(k, extra=None):
    k.c("---- prep ----")
    Lwd = k.label("Lwd"); Ldone = k.label("Lpd")
    k.e(f"""
    s_mul_i32 s22, s16, 6
    s_add_u32 s22, s22, s17
    s_sub_u32 s22, s22, 10                 ; unit u
    s_cmp_ge_u32 s22, 48
    s_cbranch_scc1 {Lwd}
    """)
    k.e(f"""
    s_cmp_ge_u32 s22, 24
    s_cselect_b32 s8, s{P_WU}, s{P_WG}
    s_cselect_b32 s9, s{P_WU+1}, s{P_WG+1}
    s_cselect_b32 s23, 1, 0                ; gu
    s_cselect_b32 s24, 24, 0
    s_sub_u32 s24, s22, s24                ; fp
    s_mov_b32 s10, {640*1536*2}
    s_mov_b32 s11, 0x20000
    v_lshrrev_b32 v5, 3, v1
    v_mul_u32_u24 v5, 3072, v5
    v_and_b32 v6, 7, v1
    v_lshl_add_u32 v5, v6, 4, v5
    s_mul_i32 s25, s3, {160*3072}
    s_lshl_b32 s26, s24, 7
    s_add_u32 s25, s25, s26
    s_mul_i32 s26, s3, 20480
    """)
    for i in range(20):
        dma(k, 5, 8, (25, i*8*3072), 26, i*1024, ("w", i//2))
    k.e(f"""
    v_bfe_u32 v6, v1, 2, 2                 ; i16/4
    v_lshl_add_u32 v6, v3, 2, v6           ; 4h + i16/4
    v_lshlrev_b32 v6, 7, v6
    v_bfe_u32 v7, v1, 4, 1
    v_lshl_add_u32 v6, v7, 5, v6
    v_and_b32 v7, 3, v1
    v_lshl_add_u32 v6, v7, 3, v6
    v_add_u32 v6, s26, v6
    s_mul_i32 s27, s24, {2*82*1024}
    s_lshl_b32 s28, s23, 10
    s_add_u32 s27, s27, s28
    s_add_u32 s27, s27, {WGU}
    s_mul_i32 s28, s3, {10*2048}
    s_add_u32 s28, s28, s27
    s_mov_b32 s29, 0x3f803f80
    v_mov_b32 v8, 0
    v_mov_b32 v9, 0
    """)
    for kl in range(10):
        k.wait(vm=("w", kl))
        for hf in range(2):
            d = 16 + ((kl % 2)*2 + hf)*4
            for sec in range(2):
                k.e(f"ds_read_b64_tr_b16 {vr(d+2*sec,2)}, v6 offset:{kl*2048 + sec*1024 + hf*64}", ("t", kl, hf))
        for hf in range(2):
            d = 16 + ((kl % 2)*2 + hf)*4
            k.wait(lg=("t", kl, hf))
            gstore(k, vr(d, 4), 4, 4, 28, hf*82*1024 + kl*2048)
            for q in range(4): k.e(f"v_dot2c_f32_bf16 v{8+hf}, s29, v{d+q}")
    half_sum(k, 8, 10, 11); half_sum(k, 9, 10, 11)
    k.e(f"""
    s_lshl_b32 s30, s3, 8
    s_add_u32 s30, s30, 81920
    v_lshl_add_u32 v10, v2, 2, s30
    ds_write_b32 v10, v8
    ds_write_b32 v10, v9 offset:128
    s_waitcnt lgkmcnt(0)
    s_barrier
    s_cmp_ge_u32 s3, 2
    s_cbranch_scc1 {Ldone}
    s_lshl_b32 s30, s3, 7
    s_add_u32 s30, s30, 81920
    v_lshl_add_u32 v10, v2, 2, s30
    ds_read_b32 v12, v10
    ds_read_b32 v13, v10 offset:256
    ds_read_b32 v14, v10 offset:512
    ds_read_b32 v15, v10 offset:768
    s_waitcnt lgkmcnt(0)
    v_add_f32 v12, v12, v13
    v_add_f32 v14, v14, v15
    v_add_f32 v12, v12, v14
    v_cvt_pk_bf16_f32 v16, v12, v12        ; (hi,hi)
    v_and_b32 v13, 0xffff0000, v16
    v_sub_f32 v13, v12, v13
    v_mov_b32 v14, 0
    v_cvt_pk_bf16_f32 v17, v13, v14        ; (lo,0)
    v_cmp_eq_u32 vcc, 0, v3
    v_mov_b32 v18, 0
    v_mov_b32 v19, 0
    v_cndmask_b32 v16, v14, v16, vcc
    v_cndmask_b32 v17, v14, v17, vcc
    s_mul_i32 s30, s3, {82*1024}
    s_add_u32 s30, s30, s27
    """)
    gstore(k, vr(16, 4), 4, 4, 30, 40*2048)
    k.e(f"s_branch {Ldone}")
    k.e(f"{Lwd}:")
    k.vm = []; k.lg = []
    k.e(f"s_sub_u32 s22, s22, 48")
    srd(k, 8, P_WD, 1536*640*2)
    k.e(f"""
    v_lshrrev_b32 v5, 2, v1
    v_mul_u32_u24 v5, 1280, v5
    v_and_b32 v6, 3, v1
    v_lshl_add_u32 v5, v6, 4, v5
    s_mul_i32 s25, s22, {32*1280}
    s_mul_i32 s26, s3, 320
    s_add_u32 s25, s25, s26
    s_mul_i32 s26, s3, 10240
    """)
    for cb in range(5):
        for rh in range(2):
            dma(k, 5, 8, (25, cb*64 + rh*16*1280), 26, cb*2048 + rh*1024, ("w", cb))
    if extra: extra(k)
    k.e(f"""
    s_lshl_b32 s27, s22, 2
    s_add_u32 s27, s27, s3
    s_mul_i32 s27, s27, 3
    """)
    for i in range(3):
        Ls = k.label("Lm2")
        k.e(f"""
        s_add_u32 s28, s27, {i}
        s_cmp_ge_u32 s28, 512
        s_cbranch_scc1 {Ls}
        s_lshr_b32 s29, s28, 3                 ; rho
        s_and_b32 s30, s28, 7
        s_lshl_b32 s30, s30, 1                 ; 2 kappa
        v_lshl_add_u32 v8, v2, 6, s29          ; t
        v_add_u32 v9, s30, v3
        v_sub_u32 v10, 32, v9
        v_cmp_eq_u32 vcc, 0, v9
        v_mov_b32 v11, 16
        v_cndmask_b32 v10, v10, v11, vcc       ; tb'
        v_mul_u32_u24 v12, v8, v9
        v_mul_u32_u24 v14, v8, v10
        v_lshl_add_u32 v13, v8, 5, v12
        v_lshl_add_u32 v15, v8, 5, v14
        """)
        for q in range(4):
            k.e(f"""
            v_and_b32 v{12+q}, 2047, v{12+q}
            v_cvt_f32_u32 v{12+q}, v{12+q}
            v_mul_f32 v{12+q}, {f2u(1/2048.):#x}, v{12+q}
            v_cos_f32 v20, v{12+q}
            v_sin_f32 v21, -v{12+q}
            v_cvt_pk_bf16_f32 v{24+4*i+q}, v20, v21
            """)
        k.e(f"s_lshl_b32 s28, s28, 10\ns_add_u32 s28, s28, {M2}")
        k.e(f"buffer_store_dwordx4 {vr(24+4*i,4)}, v4, s[4:7], s28 offen")
        k.e(f"{Ls}:")
    k.e(f"""
    v_bfe_u32 v6, v1, 2, 2                 ; i16/4
    v_bfe_u32 v7, v1, 4, 1                 ; q%2
    v_lshl_add_u32 v6, v7, 2, v6
    v_lshl_add_u32 v6, v3, 4, v6           ; row = 16(q/2)+4(q%2)+i16/4
    v_lshlrev_b32 v6, 6, v6
    v_and_b32 v7, 3, v1
    v_lshl_add_u32 v6, v7, 3, v6
    v_add_u32 v6, s26, v6
    s_mul_i32 s27, s3, {2*48*5*1024}
    s_mul_i32 s28, s22, 5120
    s_add_u32 s27, s27, s28
    s_add_u32 s27, s27, {WD}
    s_waitcnt vmcnt(0)
    """)
    for i in range(10):
        d = 40 + 4*i
        for sec in range(2):
            k.e(f"ds_read_b64_tr_b16 {vr(d+2*sec,2)}, v6 offset:{(i//2)*2048 + (i%2)*32 + sec*512}", ("t", i))
        if i >= 4:
            k.wait(lg=("t", i-4)); ii = i - 4
            gstore(k, vr(40+4*ii, 4), 4, 4, 27, (ii//5)*48*5120 + (ii % 5)*1024)
    for ii in range(6, 10):
        k.wait(lg=("t", ii))
        gstore(k, vr(40+4*ii, 4), 4, 4, 27, (ii//5)*48*5120 + (ii % 5)*1024)
    k.e(f"{Ldone}:")

def p2(k, layer):
    k.c("---- P2 layer %d ----" % layer)
    Ldone = k.label("Lp2d")
    k.e(f"""
    s_lshl_b32 s22, s3, 4
    s_add_u32 s22, s22, s17                ; task
    s_cmp_ge_u32 s22, 40
    s_cbranch_scc1 {Ldone}
    s_cmp_ge_u32 s22, 20
    s_cselect_b32 s23, s19, s18            ; t1
    s_cselect_b32 s24, 20, 0
    s_sub_u32 s24, s22, s24                ; ct
    s_sub_u32 s25, 32, s23
    s_and_b32 s25, s25, 31
    s_cmp_ge_u32 s24, 10
    s_cselect_b32 s25, s25, s23            ; tv
    s_cselect_b32 s26, 0x80000000, 0
    s_cselect_b64 s[28:29], -1, 0
    s_lshl_b32 s27, s24, 5
    v_add_u32 v5, s27, v2                  ; column c
    v_sub_u32 v6, 640, v5
    v_cmp_eq_u32 vcc, 320, v6
    v_cndmask_b32 v6, v6, 0, vcc
    v_cndmask_b32 v6, v5, v6, s[28:29]     ; slot
    v_lshlrev_b32 v6, 4, v6
    v_mul_u32_u24 v7, 5120, v3
    v_add_u32 v6, v6, v7
    v_cmp_eq_u32 vcc, 0, v5
    v_mov_b32 v7, 0x7ff00000
    v_cndmask_b32 v6, v6, v7, vcc
    s_mul_i32 s25, s25, 81920
    s_add_u32 s25, s25, {VB[layer]}
    s_lshl_b32 s27, s23, 13
    s_add_u32 s27, s27, {M2}
    """)
    VF, MF, XR = 32, 64, 128
    for kap in range(8):
        gload(k, vr(VF+4*kap, 4), 6, 4, 25, kap*10240, ("v", kap))
        for n in range(2):
            gload(k, vr(MF + 32*n + 4*kap, 4), 4, 4, 27, n*32*8192 + kap*1024, ("m", kap))
    if layer == 0:
        srd(k, 8, P_X, 2048*640*2)
        k.e(f"""
        v_lshl_add_u32 v7, v2, 6, s23
        v_mul_u32_u24 v7, 1280, v7
        v_lshl_add_u32 v7, v3, 4, v7
        s_lshl_b32 s30, s24, 6
        """)
        for n in range(2):
            for kc in range(2):
                gload(k, vr(XR + 8*n + 4*kc, 4), 7, 8, 30, n*32*1280 + kc*32, "x")
    else:
        k.e(f"s_mul_i32 s30, s23, 40960\ns_lshl_b32 s31, s24, 11\ns_add_u32 s30, s30, s31\ns_add_u32 s30, s30, {X2B}")
        for n in range(2):
            for kc in range(2):
                gload(k, vr(XR + 8*n + 4*kc, 4), 4, 4, 30, n*32*40960 + kc*1024, "x")
    k.e(f"s_mul_i32 s30, s23, 40960\ns_lshl_b32 s31, s24, 11\ns_add_u32 s30, s30, s31\ns_add_u32 s30, s30, {X1B[layer]}")
    AC = 160
    for kap in range(8):
        k.wait(vm=[("v", kap), ("m", kap)])
        if kap == 0: midstamp(k)
        for q in range(4): k.e(f"v_xor_b32 v{VF+4*kap+q}, s26, v{VF+4*kap+q}")
        for n in range(2):
            c = "0" if kap == 0 else vr(AC+16*n, 16)
            k.e(f"v_mfma_f32_32x32x16_bf16 {vr(AC+16*n,16)}, {vr(VF+4*kap,4)}, {vr(MF+32*n+4*kap,4)}, {c}")
    k.wait(vm="x")
    for n in range(2):
        for kc in range(2):
            b = XR + 8*n + 4*kc
            k.e(f"v_permlane32_swap_b32 v{b}, v{b+2}\nv_permlane32_swap_b32 v{b+1}, v{b+3}")
    for n in range(2):
        for kc in range(2):
            b = XR + 8*n + 4*kc
            for q in range(4):
                a0 = AC + 16*n + 8*kc + 2*q
                k.e(f"""
                v_lshlrev_b32 v8, 16, v{b+q}
                v_and_b32 v9, 0xffff0000, v{b+q}
                v_add_f32 v8, v8, v{a0}
                v_add_f32 v9, v9, v{a0+1}
                v_cvt_pk_bf16_f32 v{b+q}, v8, v9
                """)
            gstore(k, vr(b, 4), 4, 4, 30, n*32*40960 + kc*1024)
    k.e(f"{Ldone}:")

def interleave(main, extra, start, per):
    out = []; e = list(extra)
    for i, m in enumerate(main):
        out.append(m)
        if i >= start:
            for _ in range(per):
                if e: out.append(e.pop(0))
    out += e
    return out

def p3(k, layer):
    k.c("---- P3 layer %d ----" % layer)
    XF = 96; AUG = 24
    SUM, SQ = 16, 18
    MEAN, RS, RN = 20, 21, 22
    ACC = [32, 64]
    NF = 246; CAP = 152; RA = 6; NB = 8
    k.e(f"""
    s_mul_i32 s22, s20, 40960
    s_add_u32 s22, s22, {X1B[layer]}
    s_mul_i32 s23, s17, {246*1024}
    s_lshl_b32 s24, s3, 10
    s_add_u32 s23, s23, s24
    s_add_u32 s23, s23, {WGU}
    """)
    issued = [0]
    def wgroup():
        n4 = issued[0]; issued[0] += 1
        last = min(4*n4 + 3, NF - 1)
        dma(k, 4, 4, (23, n4*4096), 24, (4*n4 % CAP)*1024, ("w", n4))
    NG = (NF + 3)//4
    for i in range(20):
        for q in range(2):
            kap = 2*i + q
            gload(k, vr(XF+4*kap, 4), 4, 4, 22, kap*1024, ("x", kap))
        wgroup()
    wgroup()
    midstamp(k)
    for v in (SUM, SUM+1, SQ, SQ+1): k.e(f"v_mov_b32 v{v}, 0")
    k.e(f"""
    s_mov_b32 s26, 0x3f803f80
    v_add_u32 v5, 0x10000, v4
    v_add_u32 v6, 0x20000, v4
    v_bfe_u32 v7, v1, 4, 1
    v_mul_u32_u24 v7, {48*1024}, v7
    v_and_b32 v8, 15, v1
    v_lshl_add_u32 v7, v8, 4, v7
    v_lshl_add_u32 v7, v3, 8, v7
    s_mul_i32 s27, s20, {2*48*1024}
    s_mul_i32 s28, s17, 3072
    s_add_u32 s27, s27, s28
    s_add_u32 s27, s27, {HB[layer]}
    """)
    stages = [0, 8, 20, 32, 44, 56, 68, 84, 112, 140, 168, 196, 224]
    def rd(n):
        off = (n % CAP)*1024
        reg = 4 + off // 65536
        k.e(f"ds_read_b128 {ar(4*(n % NB), 4)}, v{reg} offset:{off % 65536}", ("r", n))
    def pre_read(n):
        if n in stages:
            nxt = min([s for s in stages if s > n] + [NF])
            assert issued[0] >= (nxt + 3)//4, (n, nxt, issued)
            k.wait(vm=[("w", q) for q in range((nxt + 3)//4)])
            k.e("s_barrier")
            if n == 0: midstamp(k)
            free_upto = n - RA - 1 + CAP
            return free_upto
        return None
    def epi(ft):
        g = ACC[ft % 2]; u = g + 16; L = []
        T = 8
        for i in range(16):
            t = T + (i % 4)
            L += [f"v_mul_f32 v{g+i}, v{g+i}, v{RN}", f"v_exp_f32 v{g+i}, v{g+i}", f"v_mul_f32 v{u+i}, v{u+i}, v{RS}"]
        M = []
        for i in range(16):
            M += [f"v_add_f32 v{g+i}, 1.0, v{g+i}", f"v_rcp_f32 v{g+i}, v{g+i}"]
        N = []
        for i in range(16):
            N += [f"v_mul_f32 v{u+i}, v{u+i}, v{g+i}"]
            if i % 2 == 1: N += [f"v_cvt_pk_bf16_f32 v{g + i//2}, v{u+i-1}, v{u+i}"]
            if i % 8 == 7: N += [("st", ft, i//8)]
        return L + M + N
    def emit_extra(x):
        if isinstance(x, tuple):
            _, ft, ab = x
            gstore(k, vr(ACC[ft % 2] + 4*ab, 4), 7, 4, 27, ft*1024 + ab*512, tmp=29)
        else: k.e(x)
    free = CAP - 1
    pend = []
    for n in range(RA):
        f = pre_read(n); free = f if f is not None else free
        rd(n)
    for n in range(NF):
        ft, rem = divmod(n, 82); kap, gu = divmod(rem, 2)
        if n + RA < NF:
            f = pre_read(n + RA); free = f if f is not None else free
            rd(n + RA)
        if issued[0] < NG and 4*issued[0] + 3 <= free and len(k.vm) < 60 and n % 2 == 0:
            wgroup()
        if rem == 0 and ft > 0: pend = pend + epi(ft - 1); midstamp(k)
        if ft == 0 and kap < 40 and gu == 0: k.wait(vm=("x", kap))
        if ft == 0 and kap == 40 and gu == 0:
            k.e(f"v_add_f32 v{SUM}, v{SUM}, v{SUM+1}\nv_add_f32 v{SQ}, v{SQ}, v{SQ+1}")
            row_stats(k, SUM, SQ, MEAN, RS, 8, 9)
            k.e(f"""
            v_mul_f32 v{RN}, {f2u(-LOG2E):#x}, v{RS}
            v_sub_f32 v8, 0, v{MEAN}
            v_cvt_pk_bf16_f32 v9, v8, v8
            v_and_b32 v10, 0xffff0000, v9
            v_sub_f32 v10, v8, v10
            v_cvt_pk_bf16_f32 v10, v8, v10
            v_and_b32 v9, 0xffff, v9               ; (hi, 0)
            v_cmp_eq_u32 vcc, 0, v3
            v_mov_b32 v{AUG+2}, 0
            v_mov_b32 v{AUG+3}, 0
            v_cndmask_b32 v{AUG}, v{AUG+2}, v10, vcc
            v_cndmask_b32 v{AUG+1}, v{AUG+2}, v9, vcc
            """)
        k.wait(lg=("r", n))
        acc = ACC[ft % 2] + 16*gu
        xf = XF + 4*kap if kap < 40 else AUG
        c = "0" if kap == 0 else vr(acc, 16)
        k.e(f"v_mfma_f32_32x32x16_bf16 {vr(acc,16)}, {ar(4*(n % NB),4)}, {vr(xf,4)}, {c}")
        if ft == 0 and kap < 40:
            for q in range(2):
                r_ = xf + 2*gu + q
                k.e(f"v_dot2c_f32_bf16 v{SUM+q}, s26, v{r_}")
                k.e(f"v_dot2c_f32_bf16 v{SQ+q}, v{r_}, v{r_}")
        elif rem >= 4:
            for _ in range(2):
                if pend: emit_extra(pend.pop(0))
    assert issued[0] == NG, issued
    assert not pend
    midstamp(k)
    for x in epi(2): emit_extra(x)
    midstamp(k)

def p4(k, layer):
    k.c("---- P4 layer %d ----" % layer)
    ACC = 32; NS = 7
    k.e(f"""
    s_lshr_b32 s22, s17, 3                 ; half
    s_and_b32 s23, s17, 7                  ; cs
    s_cmp_eq_u32 s22, 0
    s_cselect_b32 s24, s18, s19
    s_mul_i32 s25, s23, {48*5120}
    s_mul_i32 s26, s3, {12*5120}
    s_add_u32 s25, s25, s26
    s_add_u32 s25, s25, {WD}
    s_mul_i32 s26, s24, {2*48*1024}
    s_mul_i32 s27, s3, {12*1024}
    s_add_u32 s26, s26, s27
    s_add_u32 s26, s26, {HB[layer]}
    """)
    for i in range(4):
        k.e(f"""
        s_xor_b32 s27, s3, {i}
        s_lshr_b32 s28, s27, 1
        s_lshl_b32 s28, s28, 6
        s_and_b32 s27, s27, 1
        s_add_u32 s27, s27, s28
        s_mul_i32 s27, s27, {48*1024}
        s_add_u32 s{60+i}, s27, s26
        """)
    order = [3*p + j for j in range(3) for p in range(4)]
    def loads(idx):
        F = order[idx]; b = (idx % NS)*36
        for i in range(4): gload(k, ar(b + 4*i, 4), 4, 4, 60+i, F*1024, ("f", idx))
        for mt in range(5): gload(k, ar(b + 16 + 4*mt, 4), 4, 4, 25, F*5120 + mt*1024, ("f", idx))
    for idx in range(6): loads(idx)
    midstamp(k)
    k.e(f"""
    s_lshr_b32 s27, s3, 1
    s_lshl_b32 s27, s27, 5
    s_add_u32 s27, s27, s24                ; rho
    s_and_b32 s28, s3, 1
    s_lshl_b32 s28, s28, 4
    v_and_b32 v5, 15, v1
    v_add_u32 v5, s28, v5                  ; l
    v_bfe_u32 v6, v1, 4, 1                 ; q%2
    v_lshlrev_b32 v7, 4, v5
    v_lshl_add_u32 v8, v6, 9, v7
    v_lshl_add_u32 v8, v3, 3, v8
    s_mul_i32 s29, s27, 40960
    s_mul_i32 s30, s23, 5120
    s_add_u32 s29, s29, s30
    s_add_u32 s30, s29, {X1B[layer]}
    """)
    for mt in range(5): gload(k, vr(112 + 2*mt, 2), 8, 4, 30, mt*1024, "res", n=2)
    if layer == 0:
        k.e(f"""
        v_lshl_add_u32 v9, v3, 9, v7
        v_lshl_add_u32 v9, v6, 3, v9
        s_add_u32 s30, s29, {X2B}
        """)
    else:
        srd(k, 8, P_OUT, 2048*640*2)
        k.e(f"""
        v_lshl_add_u32 v9, v5, 6, s27
        v_mul_u32_u24 v9, 1280, v9
        v_lshrrev_b32 v10, 4, v1
        v_lshl_add_u32 v9, v10, 3, v9
        s_mul_i32 s30, s23, 160
        """)
    for i in range(1, 4):
        k.e(f"s_xor_b32 s27, s3, {i}\ns_mul_i32 s27, s27, 15360\nv_add_u32 v{10+i}, s27, v4")
    k.e(f"s_mul_i32 s27, s3, 15360\nv_add_u32 v10, s27, v4")
    for idx in range(12):
        k.wait(vm=("f", idx))
        if idx == 0: midstamp(k)
        b = (idx % NS)*36
        if idx + 6 < 12: loads(idx + 6)
        for i in (1, 2, 3, 0):
            for mt in range(5):
                acc = ACC + (i*5 + mt)*4
                c = "0" if idx == 0 else vr(acc, 4)
                k.e(f"v_mfma_f32_16x16x32_bf16 {vr(acc,4)}, {ar(b+16+4*mt,4)}, {ar(b+4*i,4)}, {c}")
    midstamp(k)
    for i in range(1, 4):
        for mt in range(5):
            k.e(f"ds_write_b128 v{10+i}, {vr(ACC+(i*5+mt)*4,4)} offset:{(i-1)*5120 + mt*1024}")
    k.e("s_waitcnt lgkmcnt(0)\ns_barrier")
    midstamp(k)
    RD = 128
    for mt in range(5):
        for i in range(3): k.e(f"ds_read_b128 {vr(RD + (mt*3+i)*4, 4)}, v10 offset:{i*5120 + mt*1024}", ("p", mt))
    k.wait(vm="res")
    for mt in range(5):
        k.wait(lg=("p", mt))
        a = ACC + 4*mt; r = RD + mt*12
        for q in range(4):
            k.e(f"v_add_f32 v{a+q}, v{a+q}, v{r+q}\nv_add_f32 v{r+4+q}, v{r+4+q}, v{r+8+q}")
        for q in range(2):
            k.e(f"v_lshlrev_b32 v{r+2*q}, 16, v{112+2*mt+q}\nv_and_b32 v{r+2*q+1}, 0xffff0000, v{112+2*mt+q}")
        for q in range(4):
            k.e(f"v_add_f32 v{a+q}, v{a+q}, v{r+4+q}\nv_add_f32 v{a+q}, v{a+q}, v{r+q}")
        k.e(f"v_cvt_pk_bf16_f32 v{112+2*mt}, v{a}, v{a+1}\nv_cvt_pk_bf16_f32 v{113+2*mt}, v{a+2}, v{a+3}")
        if layer == 0: gstore(k, vr(112+2*mt, 2), 9, 4, 30, mt*1024, n=2)
        else: gstore(k, vr(112+2*mt, 2), 9, 8, 30, mt*32, n=2)

def make_multi():
    ks = []; ls = []
    idx = 0
    for layer in range(2):
        k = K(f"p1l{layer}_kernel"); k.nv = 256; k.na = 64
        prologue(k)
        if layer == 0:
            k.e(f"s_cmp_ge_u32 s17, 10\ns_cbranch_scc1 L_prep")
            p1(k, 0)
            k.e("s_branch L_p1_done\nL_prep:")
            k.vm = []; k.lg = []
            prep(k)
            k.e("L_p1_done:")
        else:
            k.e(f"s_cmp_ge_u32 s17, 10\ns_cbranch_scc1 L_end_{k.name}")
            p1(k, 1)
        epilogue(k, idx); idx += 1
        ks.append(k); ls.append((k, 256, 256, 163840))
        k = K(f"p2l{layer}_kernel"); k.nv = 192; k.na = 0
        prologue(k); p2(k, layer); epilogue(k, idx); idx += 1
        ks.append(k); ls.append((k, 256, 256, 0))
        k = K(f"p3l{layer}_kernel"); k.nv = 256; k.na = 32
        prologue(k); p3(k, layer); epilogue(k, idx); idx += 1
        ks.append(k); ls.append((k, 256, 256, 155648))
        k = K(f"p4l{layer}_kernel"); k.nv = 192; k.na = 252
        prologue(k); p4(k, layer); epilogue(k, idx); idx += 1
        ks.append(k); ls.append((k, 256, 256, 61440))
    return ks, ls

HEADER = """FNet mixing + GLU, two interleaved layer pairs. Generated by gen/gen.py (hand-written generator).
Kernarg: in[0..8], out, debug, ws (8-byte pointers)."""

if __name__ == "__main__":
    out = sys.argv[1]
    for a in sys.argv[2:]:
        key, val = a.split("=")
        OPT[key] = {"True": True, "False": False}.get(val, val)
    ks, ls = make_multi()
    open(out, "w").write(build_file(ks, ls, HEADER))
    for k in ks: print(k.name, "lines", len(k.lines), "nops", k.nnop, "maxv", k.maxv, "maxa", getattr(k, "maxa", -1), "maxs", k.maxs)
```

```python
import sys, math, struct
from asmlib import *
import gen as G
from gen import OPT, f2u, srd, prologue, epilogue, midstamp, dma, gload, gstore, half_sum, TS
from gen import WGU, WD, M2, VB, X1B, HB, X2B, FLG, LOG2E
from gen import P_X, P_WG, P_WU, P_WD, P_OUT

DFTF = 0x2210000
ST1 = [0x22E0000, 0x2330000]
ST2 = 0x2380000
assert ST2 + 0x20000 <= G.WS_SIZE
C_S1 = lambda L: FLG + L*0x1000
C_S2 = lambda L, c: FLG + 0x2000 + (L*3 + c)*0x1000
C_S3 = FLG + 0x8000
C_S4 = FLG + 0x9000
LMISC = 152*1024
OPT.update(A=20, sleep=2)

def stats_finish(k, vs, vq, vmean, vr_, t0, t1):
    G.row_stats(k, vs, vq, vmean, vr_, t0, t1)

def wg_arrive(k, word, nexp, cnt_sgpr, t=30):
    L = k.label("Larr")
    k.e(f"""
    s_waitcnt vmcnt(0)
    v_mov_b32 v{t}, {LMISC + 4*word}
    v_mov_b32 v{t+1}, 1
    s_mov_b64 exec, 1
    ds_add_rtn_u32 v{t}, v{t}, v{t+1}
    s_waitcnt lgkmcnt(0)
    v_readfirstlane_b32 s21, v{t}
    s_cmp_lg_u32 s21, {nexp}
    s_cbranch_scc1 {L}
    v_mov_b32 v{t}, 0
    buffer_atomic_add v{t+1}, v{t}, s[4:7], s{cnt_sgpr} offen sc1
    {L}:
    s_mov_b64 exec, -1
    """)
    k.vm = ["STORE"]

def poll(k, cnt_sgpr, target, nl=1, t=30):
    P = k.label("Lp"); Q = k.label("Lq")
    k.e(f"""
    v_lshlrev_b32 v{t}, 8, v1
    s_mov_b64 exec, {(1 << nl) - 1}
    s_mov_b32 s21, 0
    {P}:
    buffer_load_dword v{t+1}, v{t}, s[4:7], s{cnt_sgpr} offen sc1
    s_add_u32 s21, s21, 1
    s_waitcnt vmcnt(0)
    v_cmp_ne_u32 vcc, {target}, v{t+1}
    s_cbranch_vccz {Q}
    s_cmp_lt_u32 s21, 0x40000
    s_cbranch_scc0 {Q}
    s_sleep {OPT['sleep']}
    s_branch {P}
    {Q}:
    s_mov_b64 exec, -1
    """)

def m1_frags(k, MC, MS, MN, T):
    k.e(f"""
    v_cvt_f32_u32 v{T}, v2
    v_mul_f32 v{T}, {f2u(1/32.):#x}, v{T}
    v_cvt_f32_u32 v{T+1}, v3
    v_mul_f32 v{T+1}, 4.0, v{T+1}
    v_mul_f32 v{T+1}, v{T+1}, v{T}
    """)
    for kp in range(2):
        for jp in range(4):
            for sub in range(2):
                j = 2*jp + sub
                s1 = 16*kp + 8*(j//4) + j % 4
                k.e(f"v_fmamk_f32 v{T+2+sub}, v{T}, {f2u(float(s1)):#x}, v{T+1}")
            k.e(f"v_cos_f32 v{T+4}, v{T+2}\nv_cos_f32 v{T+5}, v{T+3}\nv_sin_f32 v{T+6}, v{T+2}\nv_sin_f32 v{T+7}, v{T+3}")
            d = 4*kp + jp
            k.e(f"v_cvt_pk_bf16_f32 v{MC+d}, v{T+4}, v{T+5}\nv_cvt_pk_bf16_f32 v{MS+d}, v{T+6}, v{T+7}")
            k.e(f"v_xor_b32 v{MN+d}, 0x80008000, v{MC+d}")

def p1_tail(k, layer, VRS, ACA, ACB, MC, MS, MN, XB, flags, mid=None):
    k.e(f"""
    s_lshl_b32 s25, s3, 7
    s_add_u32 s25, s25, {LMISC + 1024}
    v_lshl_add_u32 v30, v2, 2, s25
    v_lshl_add_u32 v31, v3, 4, s25
    ds_write_b32 v30, v{VRS}
    s_waitcnt lgkmcnt(0)
    """)
    RM = 96
    for q in range(4): k.e(f"ds_read_b128 {vr(RM+4*q,4)}, v31 offset:{32*q}", "rm")
    k.e("s_barrier")
    if mid: mid(0)
    k.wait(lg="rm")
    PA, PB = 112, 120
    for acc, dst in ((ACA, PA), (ACB, PB)):
        for i in range(16): k.e(f"v_mul_f32 v{acc+i}, v{acc+i}, v{RM+i}")
        for i in range(8): k.e(f"v_cvt_pk_bf16_f32 v{dst+i}, v{acc+2*i}, v{acc+2*i+1}")
    VR_, VI_ = 128, 144
    k.e(f"""
    v_mfma_f32_32x32x16_bf16 {vr(VR_,16)}, {vr(MC,4)}, {vr(PA,4)}, 0
    v_mfma_f32_32x32x16_bf16 {vr(VI_,16)}, {vr(MS,4)}, {vr(PA,4)}, 0
    v_mfma_f32_32x32x16_bf16 {vr(VR_,16)}, {vr(MC+4,4)}, {vr(PA+4,4)}, {vr(VR_,16)}
    v_mfma_f32_32x32x16_bf16 {vr(VI_,16)}, {vr(MS+4,4)}, {vr(PA+4,4)}, {vr(VI_,16)}
    v_mfma_f32_32x32x16_bf16 {vr(VR_,16)}, {vr(MS,4)}, {vr(PB,4)}, {vr(VR_,16)}
    v_mfma_f32_32x32x16_bf16 {vr(VI_,16)}, {vr(MN,4)}, {vr(PB,4)}, {vr(VI_,16)}
    v_mfma_f32_32x32x16_bf16 {vr(VR_,16)}, {vr(MS+4,4)}, {vr(PB+4,4)}, {vr(VR_,16)}
    v_mfma_f32_32x32x16_bf16 {vr(VI_,16)}, {vr(MN+4,4)}, {vr(PB+4,4)}, {vr(VI_,16)}
    s_lshl_b32 s21, s3, 2
    s_add_u32 s21, s21, {XB}
    v_lshl_add_u32 v30, v2, 4, s21
    v_lshl_add_u32 v30, v3, 11, v30
    s_lshl_b32 s22, s3, 12
    s_add_u32 s22, s22, {XB}
    v_add_u32 v31, s22, v4
    s_mul_i32 s23, s16, 5120
    s_lshl_b32 s24, s17, 9
    s_add_u32 s23, s23, s24
    s_mul_i32 s24, s3, {8*81920}
    s_add_u32 s23, s23, s24
    s_add_u32 s23, s23, {VB[layer]}
    v_mul_u32_u24 v28, 81920, v3
    v_lshl_add_u32 v28, v2, 4, v28
    """)
    for i in range(16):
        k.e(f"v_cvt_pk_bf16_f32 v{160+i}, v{VR_+i}, v{VI_+i}")
        k.e(f"ds_write_b32 v30, v{160+i} offset:{(8*(i//4) + i%4)*512}")
    k.e("s_waitcnt lgkmcnt(0)\ns_barrier")
    for i in range(4): k.e(f"ds_read_b128 {vr(176+4*i,4)}, v31 offset:{i*1024}", ("o", i))
    for i in range(4):
        k.wait(lg=("o", i))
        gstore(k, vr(176+4*i, 4), 28, 4, 23, 2*i*81920, flags=flags)

def p1_first(k):
    k.c("---- P1 layer 0 ----")
    AX, XV = 12, 16
    SUM, SQ = 24, 26
    MC, MS, MN = 32, 40, 48
    ACA, ACB = 64, 80
    XF = 96
    srd(k, 12, P_X, 2048*640*2)
    k.e("v_lshrrev_b32 v28, 3, v1\nv_and_b32 v29, 7, v1")
    for i in range(4):
        k.e(f"""
        v_add_u32 v30, {8*i}, v28
        v_bfe_u32 v31, v30, 1, 3
        v_xor_b32 v31, v31, v29
        v_lshl_add_u32 v30, v30, 6, s20
        v_mul_u32_u24 v30, 1280, v30
        v_lshl_add_u32 v{XV+i}, v31, 4, v30
        """)
    k.e(f"s_mul_i32 s25, s3, 20480\ns_add_u32 s25, s25, 81920")
    def x_piece(p):
        for i in range(4):
            dma(k, XV+i, 12, (None, p*128), 25, (p % 5)*4096 + i*1024, ("x", p))
    for p in range(5): x_piece(p)
    midstamp(k, "xissued")
    k.e(f"""
    s_lshl_b32 s22, s17, 5
    v_add_u32 v28, s22, v2
    v_cmp_eq_u32 vcc, 0, v28
    v_mov_b32 v29, 320
    v_cndmask_b32 v28, v28, v29, vcc
    v_cvt_f32_u32 v28, v28
    v_mul_f32 v28, {f2u(1/640.):#x}, v28        ; e/640
    s_mul_i32 s22, s3, 160
    v_lshl_add_u32 v29, v3, 3, s22
    v_cvt_f32_u32 v29, v29                      ; d base = 160w + 8h
    s_mul_i32 s22, s3, 20480
    v_add_u32 v5, s22, v4
    s_mul_i32 s23, s17, 81920
    s_add_u32 s23, s23, s22
    s_add_u32 s23, s23, {DFTF}
    s_mul_i32 s24, s3, 10
    s_sub_u32 s24, s16, s24
    s_mov_b32 s26, 0
    """)
    Lg = k.label("Lgen")
    k.e(f"{Lg}:")
    k.e("v_mul_f32 v30, v29, v28")
    for jp in range(4):
        for sub in range(2):
            j = 2*jp + sub
            if j == 0: k.e("v_fract_f32 v56, v30")
            else: k.e(f"v_fmamk_f32 v{56+sub}, v28, {f2u(float(j)):#x}, v30\nv_fract_f32 v{56+sub}, v{56+sub}")
        k.e(f"v_cos_f32 v58, v56\nv_cos_f32 v59, v57\nv_sin_f32 v60, -v56\nv_sin_f32 v61, -v57")
        k.e(f"v_cvt_pk_bf16_f32 v{64+jp}, v58, v59\nv_cvt_pk_bf16_f32 v{68+jp}, v60, v61")
    Ls = k.label("Lns")
    k.e(f"""
    ds_write_b128 v5, v[64:67]
    ds_write_b128 v5, v[68:71] offset:1024
    s_sub_u32 s27, s26, s24
    s_and_b32 s27, s27, 15
    s_cmp_lg_u32 s27, 0
    s_cbranch_scc1 {Ls}
    buffer_store_dwordx4 v[64:67], v4, s[4:7], s23 offen
    buffer_store_dwordx4 v[68:71], v4, s[4:7], s23 offen offset:1024
    {Ls}:
    v_add_f32 v29, 0x41800000, v29
    v_add_u32 v5, 2048, v5
    s_add_u32 s23, s23, 2048
    s_add_u32 s26, s26, 1
    s_cmp_lt_u32 s26, 10
    s_nop 1
    s_cbranch_scc1 {Lg}
    """)
    k.vm += ["STORE"]*4
    k.e(f"v_bfe_u32 v28, v2, 1, 3\nv_lshlrev_b32 v29, 7, v2\nv_add_u32 v29, s25, v29\nv_add_u32 v5, 0x10000, v4")
    for j in range(4):
        k.e(f"v_add_u32 v30, {2*j}, v3\nv_xor_b32 v30, v30, v28\nv_lshl_add_u32 v{AX+j}, v30, 4, v29")
    m1_frags(k, MC, MS, MN, 56)
    for v in (SUM, SUM+1, SQ, SQ+1): k.e(f"v_mov_b32 v{v}, 0")
    k.e("s_mov_b32 s26, 0x3f803f80\ns_waitcnt lgkmcnt(0)\ns_barrier")
    midstamp(k, "dftgen")
    def reads(p):
        bs = (p % 2) * 32
        for i in range(4):
            k.e(f"ds_read_b128 {vr(XF + (p%2)*16 + 4*i, 4)}, v{AX+i} offset:{(p%5)*4096}", ("r", p))
            for n in range(2):
                off = ((4*p + i)*2 + n)*1024
                k.e(f"ds_read_b128 {ar(bs + 8*i + 4*n, 4)}, v{4 + off//65536} offset:{off % 65536}", ("r", p))
    def mfmas(p):
        bs = (p % 2) * 32
        for i in range(4):
            kap = 4*p + i
            xf = XF + (p % 2)*16 + 4*i
            for n, acc in ((0, ACA), (1, ACB)):
                c = "0" if kap == 0 else vr(acc, 16)
                k.e(f"v_mfma_f32_32x32x16_bf16 {vr(acc,16)}, {vr(xf,4)}, {ar(bs + 8*i + 4*n, 4)}, {c}")
                for q in range(2):
                    r_ = xf + 2*n + q
                    k.e(f"v_dot2c_f32_bf16 v{SUM+q}, s26, v{r_}")
                    k.e(f"v_dot2c_f32_bf16 v{SQ+q}, v{r_}, v{r_}")
    for p in range(10):
        k.wait(vm=("x", p))
        reads(p)
        if p > 0:
            k.wait(lg=("r", p-1))
            if p - 1 + 5 < 10: x_piece(p - 1 + 5)
            mfmas(p - 1)
    k.wait(lg=("r", 9))
    mfmas(9)
    midstamp(k, "loop")
    k.e(f"v_add_f32 v{SUM}, v{SUM}, v{SUM+1}\nv_add_f32 v{SQ}, v{SQ}, v{SQ+1}")
    stats_finish(k, SUM, SQ, 28, 29, 30, 31)
    k.e("s_barrier")
    p1_tail(k, 0, 29, ACA, ACB, MC, MS, MN, 0, "")

def prep_extra(k):
    L = k.label("Lz")
    k.e(f"""
    s_cmp_ge_u32 s22, 40
    s_cbranch_scc1 {L}
    s_cmp_lg_u32 s3, 0
    s_cbranch_scc1 {L}
    v_mov_b32 v8, 0
    v_mov_b32 v9, 0
    v_mov_b32 v10, 0
    v_mov_b32 v11, 0
    s_lshl_b32 s27, s22, 10
    s_add_u32 s27, s27, {FLG}
    buffer_store_dwordx4 v[8:11], v4, s[4:7], s27 offen
    {L}:
    """)

CAP = 152
NF = 246
def wslot(n, L): return (n + (96 if L else 0)) % CAP

def w_setup(k):
    k.e(f"""
    s_mul_i32 s56, s17, {246*1024}
    s_add_u32 s56, s56, {WGU}
    s_lshl_b32 s57, s3, 10                 ; w*1024
    s_add_u32 s58, s56, s57                ; + w*1024
    s_and_b32 s23, s17, 7
    s_mul_i32 s59, s23, {48*5120}
    s_mul_i32 s24, s3, {12*5120}
    s_add_u32 s59, s59, s24
    s_add_u32 s59, s59, {WD}
    s_lshl_b32 s64, s16, 8                 ; g*256
    """)
ORDER = [3*p + j for j in range(3) for p in range(4)]
def wd_load(k, i):
    idx, mt = divmod(i, 5)
    gload(k, ar(4*i, 4), 4, 4, 59, ORDER[idx]*5120 + mt*1024, ("wd", i))
def w_single(k, n, L):
    dma(k, 4, 4, (56, n*1024), None, wslot(n, L)*1024, ("w", n//4))
def w_group(k, n4, L):
    dma(k, 4, 4, (58, n4*4096), 57, wslot(4*n4, L)*1024, ("w", n4))

def p2(k, L):
    k.c("---- P2 layer %d ----" % L)
    Lrest = k.label("Lp2r"); Lload = k.label("Lp2l"); Ljoin = k.label("Lp2j")
    VF, MF, XR, AC = 32, 64, 128, 160
    k.e(f"""
    s_lshl_b32 s22, s3, 4
    s_add_u32 s22, s22, s17                ; task
    s_cmp_ge_u32 s22, 20
    s_cselect_b32 s23, s19, s18            ; t1
    s_cselect_b32 s24, 20, 0
    s_sub_u32 s24, s22, s24                ; ct
    s_sub_u32 s25, 32, s23
    s_and_b32 s25, s25, 31
    s_cmp_ge_u32 s24, 10
    s_cselect_b32 s25, s25, s23            ; tv
    s_cselect_b32 s26, 0x80000000, 0
    s_cselect_b64 s[28:29], -1, 0
    s_lshl_b32 s27, s24, 5
    v_add_u32 v5, s27, v2
    v_sub_u32 v6, 640, v5
    v_cmp_eq_u32 vcc, 320, v6
    v_cndmask_b32 v6, v6, 0, vcc
    v_cndmask_b32 v6, v5, v6, s[28:29]
    v_lshlrev_b32 v6, 4, v6
    v_mul_u32_u24 v7, 5120, v3
    v_add_u32 v6, v6, v7
    v_cmp_eq_u32 vcc, 0, v5
    v_mov_b32 v7, 0x7ff00000
    v_cndmask_b32 v6, v6, v7, vcc
    s_mul_i32 s25, s25, 81920
    s_add_u32 s25, s25, {VB[L]}
    s_lshl_b32 s27, s23, 13
    s_add_u32 s27, s27, {M2}
    """)
    def m2_loads(kap):
        for n in range(2): gload(k, vr(MF + 32*n + 4*kap, 4), 4, 4, 27, n*32*8192 + kap*1024, ("m", kap))
    def v_load(kap): gload(k, vr(VF+4*kap, 4), 6, 4, 25, kap*10240, ("v", kap), flags="sc1" if L else "")
    def x_loads():
        if L == 0:
            srd(k, 8, P_X, 2048*640*2)
            k.e(f"v_lshl_add_u32 v7, v2, 6, s23\nv_mul_u32_u24 v7, 1280, v7\nv_lshl_add_u32 v7, v3, 4, v7\ns_lshl_b32 s30, s24, 6")
            for n in range(2):
                for kc in range(2): gload(k, vr(XR + 8*n + 4*kc, 4), 7, 8, 30, n*32*1280 + kc*32, "x")
        else:
            k.e(f"s_mul_i32 s30, s23, 40960\ns_lshl_b32 s31, s24, 11\ns_add_u32 s30, s30, s31\ns_add_u32 s30, s30, {X2B}")
            for n in range(2):
                for kc in range(2): gload(k, vr(XR + 8*n + 4*kc, 4), 4, 4, 30, n*32*40960 + kc*1024, "x", flags="sc1")
    vm0 = list(k.vm)
    if L == 0:
        k.e(f"s_cmp_ge_u32 s22, 40\ns_cbranch_scc1 {Lload}")
        for kap in range(8): v_load(kap); m2_loads(kap)
        x_loads()
        vmT = list(k.vm)
        k.e(f"{Lload}:")
        Lz = k.label("Lz")
        k.e(f"""
        s_cmp_lg_u32 s3, 3
        s_cbranch_scc1 {Lz}
        v_mov_b32 v8, 0
        v_lshlrev_b32 v9, 2, v1
        v_add_u32 v9, {LMISC}, v9
        ds_write_b32 v9, v8
        s_waitcnt lgkmcnt(0)
        {Lz}:
        s_barrier
        s_cmp_ge_u32 s22, 40
        s_cbranch_scc1 {Lrest}
        """)
        k.vm = vmT
    else:
        k.e(f"s_cmp_ge_u32 s22, 40\ns_cbranch_scc1 {Lload}")
        for kap in range(8): m2_loads(kap)
        vmT = list(k.vm)
        k.e(f"{Lload}:")
        Lnp = k.label("Lnp")
        k.e(f"s_cmp_lg_u32 s3, 3\ns_cbranch_scc1 {Lnp}\ns_mov_b32 s31, {C_S4}")
        poll(k, 31, 16, nl=10)
        k.e(f"{Lnp}:\ns_barrier")
        midstamp(k, "S4")
        k.e(f"s_cmp_ge_u32 s22, 40\ns_cbranch_scc1 {Lrest}")
        k.vm = vmT
        for kap in range(8): v_load(kap)
        x_loads()
    k.e(f"s_mul_i32 s30, s23, 40960\ns_lshl_b32 s31, s24, 11\ns_add_u32 s30, s30, s31\ns_add_u32 s30, s30, {X1B[L]}")
    k.e(f"""
    s_mul_i32 s31, s23, 5120
    s_lshl_b32 s27, s24, 8
    s_add_u32 s31, s31, s27
    s_add_u32 s31, s31, {ST1[L]}
    v_mul_u32_u24 v7, {32*5120}, v3
    v_lshl_add_u32 v7, v2, 3, v7
    s_mov_b32 s27, 0x3f803f80
    """)
    for v in range(12, 16): k.e(f"v_mov_b32 v{v}, 0")
    for kap in range(8):
        k.wait(vm=[("v", kap), ("m", kap)])
        for q in range(4): k.e(f"v_xor_b32 v{VF+4*kap+q}, s26, v{VF+4*kap+q}")
        for n in range(2):
            c = "0" if kap == 0 else vr(AC+16*n, 16)
            k.e(f"v_mfma_f32_32x32x16_bf16 {vr(AC+16*n,16)}, {vr(VF+4*kap,4)}, {vr(MF+32*n+4*kap,4)}, {c}")
    k.wait(vm="x")
    midstamp(k, "p2mfma")
    for n in range(2):
        for kc in range(2):
            b = XR + 8*n + 4*kc
            k.e(f"v_permlane32_swap_b32 v{b}, v{b+2}\nv_permlane32_swap_b32 v{b+1}, v{b+3}")
    for n in range(2):
        for kc in range(2):
            b = XR + 8*n + 4*kc
            for q in range(4):
                a0 = AC + 16*n + 8*kc + 2*q
                k.e(f"""
                v_lshlrev_b32 v8, 16, v{b+q}
                v_and_b32 v9, 0xffff0000, v{b+q}
                v_add_f32 v8, v8, v{a0}
                v_add_f32 v9, v9, v{a0+1}
                v_cvt_pk_bf16_f32 v{b+q}, v8, v9
                """)
            gstore(k, vr(b, 4), 4, 4, 30, n*32*40960 + kc*1024, flags="sc1")
            for q in range(4):
                k.e(f"v_dot2c_f32_bf16 v{12+2*n}, s27, v{b+q}\nv_dot2c_f32_bf16 v{13+2*n}, v{b+q}, v{b+q}")
    k.e(f"""
    v_permlane32_swap_b32 v12, v14
    v_permlane32_swap_b32 v13, v15
    v_add_f32 v12, v12, v14
    v_add_f32 v13, v13, v15
    """)
    gstore(k, "v[12:13]", 7, 4, 31, 0, n=2, flags="sc1")
    k.e(f"s_cmp_lt_u32 s17, 8\ns_cselect_b32 s22, 2, 1\ns_add_u32 s23, s64, {C_S1(L)}")
    midstamp(k, "p2st")
    wg_arrive(k, L, "s22", 23)
    midstamp(k, "p2arr")
    k.e(f"{Lrest}:")
    k.vm = []

def pre_p3(k, L):
    Lp = k.label("Lnp")
    if L == 0:
        Lw = k.label("Lnw")
        k.e(f"s_cmp_lg_u32 s3, 3\ns_cbranch_scc1 {Lw}")
        for n in range(CAP): w_single(k, n, L)
        midstamp(k, "fill")
        k.e(f"{Lw}:")
        k.e("s_waitcnt vmcnt(40)"); k.vm = k.vm[-40:]
        for i in range(OPT["A"]): wd_load(k, i)
    midstamp(k, "wdpre")
    k.e(f"s_cmp_lg_u32 s3, 3\ns_cbranch_scc1 {Lp}\ns_add_u32 s23, s64, {C_S1(L)}")
    poll(k, 23, 16)
    k.e(f"{Lp}:")
    if L == 1: k.e("s_waitcnt vmcnt(0)")
    k.e("s_barrier")
    k.vm = [("wd", i) for i in range(OPT["A"])] if L == 0 else []

def p3(k, L):
    k.c("---- P3 layer %d ----" % L)
    XF = 96; AUG = 24; RS, RN = 28, 29
    ACC = [32, 64]
    RA = 6
    RING = [ar(240, 4), ar(244, 4), ar(248, 4), ar(252, 4), vr(8, 4), vr(12, 4), vr(16, 4), vr(20, 4)]
    NB = len(RING)
    k.e(f"""
    s_mul_i32 s22, s20, 40960
    s_add_u32 s22, s22, {X1B[L]}
    """)
    LEAD = 10
    xi = [0]
    def xload():
        kap = xi[0]; xi[0] += 1
        gload(k, vr(XF+4*kap, 4), 4, 4, 22, kap*1024, ("x", kap), flags="sc1")
    for _ in range(4): xload()
    k.e(f"""
    v_add_u32 v5, 0x10000, v4
    v_add_u32 v6, 0x20000, v4
    """)
    def rd(n):
        off = wslot(n, L)*1024
        k.e(f"ds_read_b128 {RING[n % NB]}, v{4 + off//65536} offset:{off % 65536}", ("r", n))
    for n in range(RA): rd(n)
    for _ in range(LEAD - 4): xload()
    k.e(f"""
    v_bfe_u32 v7, v1, 4, 1
    v_mul_u32_u24 v7, {48*1024}, v7
    v_and_b32 v30, 15, v1
    v_lshl_add_u32 v7, v30, 4, v7
    v_lshl_add_u32 v7, v3, 8, v7
    s_mul_i32 s27, s20, {2*48*1024}
    s_mul_i32 s28, s17, 3072
    s_add_u32 s27, s27, s28
    s_add_u32 s27, s27, {HB[L]}
    s_mul_i32 s28, s20, 5120
    s_add_u32 s28, s28, {ST1[L]}
    v_lshlrev_b32 v30, 3, v1
    """)
    issued = [CAP//4]; NG = (NF + 3)//4
    wdi = [OPT["A"] if L == 0 else 60]
    sti = [0]
    stages = [88, 152, 200]
    def epi(ft):
        g = ACC[ft % 2]; u = g + 16; Ls = []
        for i in range(16):
            Ls += [f"v_mul_f32 v{g+i}, v{g+i}, v{RN}", f"v_exp_f32 v{g+i}, v{g+i}", f"v_mul_f32 v{u+i}, v{u+i}, v{RS}"]
        for i in range(16):
            Ls += [f"v_add_f32 v{g+i}, 1.0, v{g+i}", f"v_rcp_f32 v{g+i}, v{g+i}"]
        for i in range(16):
            Ls += [f"v_mul_f32 v{u+i}, v{u+i}, v{g+i}"]
            if i % 2 == 1: Ls += [f"v_cvt_pk_bf16_f32 v{g + i//2}, v{u+i-1}, v{u+i}"]
            if i % 8 == 7: Ls += [("st", ft, i//8)]
        return Ls
    def emit_extra(x):
        if isinstance(x, tuple):
            _, ft, ab = x
            gstore(k, vr(ACC[ft % 2] + 4*ab, 4), 7, 4, 27, ft*1024 + ab*512, tmp=29, flags="sc1")
        else: k.e(x)
    free = CAP - 1
    pend = []
    for n in range(NF):
        ft, rem = divmod(n, 82); kap, gu = divmod(rem, 2)
        m = n + RA
        if m < NF:
            if m in stages:
                nxt = min([s for s in stages if s > m] + [NF])
                assert issued[0] >= (nxt + 3)//4, (m, nxt, issued)
                k.wait(vm=[("w", q) for q in range((nxt + 3)//4)])
                k.e("s_barrier")
                free = n - 1 + CAP
            rd(m)
        if gu == 0:
            if xi[0] < 40: xload()
            elif sti[0] < 10:
                for _ in range(2):
                    gload(k, vr(64 + 2*sti[0], 2), 30, 4, 28, sti[0]*512, "st1", n=2, flags="sc1"); sti[0] += 1
            elif issued[0] < NG and 4*issued[0] + 3 <= free and (kap % 2 == 0 or wdi[0] >= 60):
                w_group(k, issued[0], L); issued[0] += 1
            elif wdi[0] < 60:
                wd_load(k, wdi[0]); wdi[0] += 1
        if rem == 0 and ft > 0: pend = pend + epi(ft - 1); midstamp(k, f"pass{ft-1}")
        if ft == 0 and kap < 40 and gu == 0: k.wait(vm=("x", kap))
        if ft == 0 and kap == 40 and gu == 0:
            k.wait(vm="st1")
            for i in range(1, 10):
                k.e(f"v_add_f32 v64, v64, v{64+2*i}\nv_add_f32 v65, v65, v{65+2*i}")
            stats_finish(k, 64, 65, 66, RS, 67, 68)
            k.e(f"""
            v_mul_f32 v{RN}, {f2u(-LOG2E):#x}, v{RS}
            v_sub_f32 v67, 0, v66
            v_cvt_pk_bf16_f32 v68, v67, v67
            v_and_b32 v69, 0xffff0000, v68
            v_sub_f32 v69, v67, v69
            v_cvt_pk_bf16_f32 v69, v67, v69
            v_and_b32 v68, 0xffff, v68
            v_cmp_eq_u32 vcc, 0, v3
            v_mov_b32 v{AUG+2}, 0
            v_mov_b32 v{AUG+3}, 0
            v_cndmask_b32 v{AUG}, v{AUG+2}, v69, vcc
            v_cndmask_b32 v{AUG+1}, v{AUG+2}, v68, vcc
            """)
        k.wait(lg=("r", n))
        acc = ACC[ft % 2] + 16*gu
        xf = XF + 4*kap if kap < 40 else AUG
        c = "0" if kap == 0 else vr(acc, 16)
        k.e(f"v_mfma_f32_32x32x16_bf16 {vr(acc,16)}, {RING[n % NB]}, {vr(xf,4)}, {c}")
        if ft > 0 and rem >= 4:
            for _ in range(2):
                if pend: emit_extra(pend.pop(0))
    assert issued[0] == NG and wdi[0] == 60 and not pend, (issued, wdi, len(pend))
    midstamp(k, "pass2")
    for x in epi(2): emit_extra(x)
    midstamp(k, "epi")
    k.e(f"s_add_u32 s23, s64, {C_S2(L, 0)}")
    wg_arrive(k, 2 + L, 3, 23)

def p4(k, L):
    k.c("---- P4 layer %d ----" % L)
    ACC = 32; HR = 112; NS = 9
    RED = 80*1024
    k.e(f"""
    s_lshr_b32 s22, s17, 3
    s_and_b32 s23, s17, 7                  ; cs
    s_cmp_eq_u32 s22, 0
    s_cselect_b32 s24, s18, s19
    s_mul_i32 s26, s24, {2*48*1024}
    s_mul_i32 s27, s3, {12*1024}
    s_add_u32 s26, s26, s27
    s_add_u32 s26, s26, {HB[L]}
    """)
    for i in range(4):
        k.e(f"""
        s_xor_b32 s27, s3, {i}
        s_lshr_b32 s28, s27, 1
        s_lshl_b32 s28, s28, 6
        s_and_b32 s27, s27, 1
        s_add_u32 s27, s27, s28
        s_mul_i32 s27, s27, {48*1024}
        s_add_u32 s{60+i}, s27, s26
        """)
    k.e(f"""
    s_lshr_b32 s27, s3, 1
    s_lshl_b32 s27, s27, 5
    s_add_u32 s27, s27, s24
    s_and_b32 s28, s3, 1
    s_lshl_b32 s28, s28, 4
    v_and_b32 v5, 15, v1
    v_add_u32 v5, s28, v5                  ; l
    v_bfe_u32 v6, v1, 4, 1
    v_lshlrev_b32 v7, 4, v5
    v_lshl_add_u32 v8, v6, 9, v7
    v_lshl_add_u32 v8, v3, 3, v8
    s_mul_i32 s29, s27, 40960
    s_mul_i32 s30, s23, 5120
    s_add_u32 s29, s29, s30
    s_add_u32 s30, s29, {X1B[L]}
    """)
    RES = 14
    for mt in range(5): gload(k, vr(RES + 2*mt, 2), 8, 4, 30, mt*1024, "res", n=2, flags="sc1")
    if L == 0:
        k.e(f"""
        v_lshl_add_u32 v9, v3, 9, v7
        v_lshl_add_u32 v9, v6, 3, v9
        s_add_u32 s30, s29, {X2B}
        s_lshl_b32 s31, s27, 11
        s_lshl_b32 s28, s23, 8
        s_add_u32 s31, s31, s28
        s_add_u32 s31, s31, {ST2}
        v_lshlrev_b32 v24, 3, v5
        s_mul_i32 s65, s17, 81920
        s_add_u32 s65, s65, s57
        s_add_u32 s65, s65, {DFTF}
        """)
    else:
        srd(k, 8, P_OUT, 2048*640*2)
        k.e(f"""
        v_lshl_add_u32 v9, v5, 6, s27
        v_mul_u32_u24 v9, 1280, v9
        v_lshrrev_b32 v10, 4, v1
        v_lshl_add_u32 v9, v10, 3, v9
        s_mul_i32 s30, s23, 160
        """)
    for i in range(1, 4):
        k.e(f"s_xor_b32 s27, s3, {i}\ns_mul_i32 s27, s27, 15360\ns_add_u32 s27, s27, {RED}\nv_add_u32 v{10+i}, s27, v4")
    k.e(f"s_mul_i32 s27, s3, 15360\ns_add_u32 s27, s27, {RED}\nv_add_u32 v10, s27, v4")
    Lp = k.label("Lnp")
    k.e(f"s_cmp_lg_u32 s3, 3\ns_cbranch_scc1 {Lp}\ns_add_u32 s27, s64, {C_S2(L, 0)}")
    poll(k, 27, 16)
    k.e(f"{Lp}:\ns_barrier")
    midstamp(k, "S2")
    hi = [0]
    def hload():
        idx, i = divmod(hi[0], 4); hi[0] += 1
        gload(k, vr(HR + ((idx % NS)*4 + i)*4, 4), 4, 4, 60+i, ORDER[idx]*1024, ("h", idx), flags="sc1")
    for _ in range(12): hload()
    di = [0]
    for idx in range(12):
        k.wait(vm=("h", idx))
        cnt = 0
        for i in (1, 2, 3, 0):
            for mt in range(5):
                acc = ACC + (i*5 + mt)*4
                c = "0" if idx == 0 else vr(acc, 4)
                k.e(f"v_mfma_f32_16x16x32_bf16 {vr(acc,4)}, {ar((idx*5+mt)*4,4)}, {vr(HR + ((idx % NS)*4 + i)*4, 4)}, {c}")
                cnt += 1
                if cnt % 4 == 0:
                    if hi[0] < 48 and hi[0]//4 < idx + NS: hload()
                    elif hi[0] >= 48 and L == 0 and di[0] < 20:
                        dma(k, 4, 4, (65, di[0]*4096), 57, di[0]*4096, "dft"); di[0] += 1
    assert hi[0] == 48
    while L == 0 and di[0] < 20:
        dma(k, 4, 4, (65, di[0]*4096), 57, di[0]*4096, "dft"); di[0] += 1
    midstamp(k, "p4mfma")
    for i in range(1, 4):
        for mt in range(5):
            k.e(f"ds_write_b128 v{10+i}, {vr(ACC+(i*5+mt)*4,4)} offset:{(i-1)*5120 + mt*1024}")
    k.e("s_waitcnt lgkmcnt(0)\ns_barrier")
    midstamp(k, "p4red")
    RD = 128
    for mt in range(5):
        for i in range(3): k.e(f"ds_read_b128 {vr(RD + (mt*3+i)*4, 4)}, v10 offset:{i*5120 + mt*1024}", ("p", mt))
    k.wait(vm="res")
    if L == 0: k.e("v_mov_b32 v26, 0\nv_mov_b32 v27, 0\ns_mov_b32 s27, 0x3f803f80")
    for mt in range(5):
        k.wait(lg=("p", mt))
        a = ACC + 4*mt; r = RD + mt*12
        for q in range(4):
            k.e(f"v_add_f32 v{a+q}, v{a+q}, v{r+q}\nv_add_f32 v{r+4+q}, v{r+4+q}, v{r+8+q}")
        for q in range(2):
            k.e(f"v_lshlrev_b32 v{r+2*q}, 16, v{RES+2*mt+q}\nv_and_b32 v{r+2*q+1}, 0xffff0000, v{RES+2*mt+q}")
        for q in range(4):
            k.e(f"v_add_f32 v{a+q}, v{a+q}, v{r+4+q}\nv_add_f32 v{a+q}, v{a+q}, v{r+q}")
        k.e(f"v_cvt_pk_bf16_f32 v{RES+2*mt}, v{a}, v{a+1}\nv_cvt_pk_bf16_f32 v{RES+2*mt+1}, v{a+2}, v{a+3}")
        if L == 0:
            gstore(k, vr(RES+2*mt, 2), 9, 4, 30, mt*1024, n=2, flags="sc1")
            for q in range(2):
                k.e(f"v_dot2c_f32_bf16 v26, s27, v{RES+2*mt+q}\nv_dot2c_f32_bf16 v27, v{RES+2*mt+q}, v{RES+2*mt+q}")
        else: gstore(k, vr(RES+2*mt, 2), 9, 8, 30, mt*32, n=2)
    if L == 0:
        for v in (26, 27):
            k.e(f"v_mov_b32 v28, v{v}\nv_mov_b32 v29, v{v}\nv_permlane16_swap_b32 v28, v29\nv_add_f32 v{v}, v28, v29")
            half_sum(k, v, 28, 29)
        k.e("s_mov_b64 exec, 0xffff")
        gstore(k, "v[26:27]", 24, 4, 31, 0, n=2, flags="sc1")
        midstamp(k, "p4st")
        k.e(f"s_mov_b64 exec, -1\ns_add_u32 s23, s64, {C_S3}")
        wg_arrive(k, 4, 3, 23)

def p1_second(k):
    k.c("---- P1 layer 1 ----")
    Lno = k.label("Lnop1"); Ljoin = k.label("Lp1j")
    MC, MS, MN = 32, 40, 48
    ACA, ACB = 64, 80
    XF = 96
    RING = [ar(240, 4), ar(244, 4), ar(248, 4), ar(252, 4), vr(8, 4), vr(12, 4), vr(16, 4), vr(20, 4)]
    NB = 8; RA = 6
    k.e(f"s_cmp_ge_u32 s17, 10\ns_cbranch_scc1 {Lno}")
    m1_frags(k, MC, MS, MN, 56)
    k.e(f"""
    s_mul_i32 s22, s20, 40960
    s_add_u32 s22, s22, {X2B}
    s_lshl_b32 s28, s20, 11
    s_add_u32 s28, s28, {ST2}
    v_lshlrev_b32 v29, 3, v1
    v_add_u32 v5, 0x10000, v4
    """)
    Lp = k.label("Lnp")
    k.e(f"s_cmp_lg_u32 s3, 3\ns_cbranch_scc1 {Lp}\ns_add_u32 s27, s64, {C_S3}")
    poll(k, 27, 16)
    k.e(f"{Lp}:\ns_barrier")
    k.vm = []
    midstamp(k, "S3")
    xi = [0]
    def xload():
        kap = xi[0]; xi[0] += 1
        gload(k, vr(XF+4*kap, 4), 4, 4, 22, kap*1024, ("x", kap), flags="sc1")
    def rd(n):
        off = n*1024
        k.e(f"ds_read_b128 {RING[n % NB]}, v{4 + off//65536} offset:{off % 65536}", ("r", n))
    for _ in range(4): xload()
    for n in range(RA): rd(n)
    for _ in range(6): xload()
    wi = [0]; sti = [0]
    for n in range(80):
        kap, nn = divmod(n, 2)
        if n + RA < 80: rd(n + RA)
        if nn == 0:
            if xi[0] < 40: xload()
            elif sti[0] < 4:
                for _ in range(2):
                    gload(k, vr(56 + 2*sti[0], 2), 29, 4, 28, sti[0]*512, "st2", n=2, flags="sc1"); sti[0] += 1
            else:
                w_group(k, wi[0], 1); wi[0] += 1
            k.wait(vm=("x", kap))
        k.wait(lg=("r", n))
        acc = ACB if nn else ACA
        c = "0" if kap == 0 else vr(acc, 16)
        k.e(f"v_mfma_f32_32x32x16_bf16 {vr(acc,16)}, {vr(XF+4*kap,4)}, {RING[n % NB]}, {c}")
    midstamp(k, "p1loop")
    k.wait(vm="st2")
    for i in range(1, 4): k.e(f"v_add_f32 v56, v56, v{56+2*i}\nv_add_f32 v57, v57, v{57+2*i}")
    stats_finish(k, 56, 57, 28, 29, 30, 31)
    def mid(_):
        pass
    p1_tail(k, 1, 29, ACA, ACB, MC, MS, MN, 80*1024, "sc1", mid)
    k.e(f"s_lshl_b32 s23, s17, 8\ns_add_u32 s23, s23, {C_S4}")
    midstamp(k, "p1st")
    wg_arrive(k, 5, 3, 23)
    midstamp(k, "p1arr")
    k.e("s_barrier")
    for n4 in range(wi[0], CAP//4): w_group(k, n4, 1)
    k.e(f"s_branch {Ljoin}\n{Lno}:")
    k.vm = []
    k.e("s_barrier")
    for n4 in range(CAP//4): w_group(k, n4, 1)
    k.e(f"{Ljoin}:")
    midstamp(k, "fill1")

def make():
    ks = []; ls = []
    k = K("k1_kernel"); k.nv = 256; k.na = 64
    prologue(k)
    k.e(f"s_cmp_ge_u32 s17, 10\ns_cbranch_scc1 L_prep")
    p1_first(k)
    k.e("s_branch L_p1_done\nL_prep:")
    k.vm = []; k.lg = []
    G.prep(k, prep_extra)
    k.e("L_p1_done:")
    epilogue(k, 0)
    ks.append(k); ls.append((k, 256, 256, 163840))
    k = K("k2_kernel"); k.nv = 256; k.na = 256
    prologue(k)
    w_setup(k)
    sel = OPT.get("stl", "0")
    real_stamp = OPT["stamp"]
    for L in range(2):
        if real_stamp: OPT["stamp"] = real_stamp if str(L) == sel[0] and sel[1:] in ("", "a") else False
        p2(k, L)
        pre_p3(k, L)
        midstamp(k, "S1")
        p3(k, L)
        if real_stamp: OPT["stamp"] = real_stamp if str(L) == sel[0] and sel[1:] == "b" else False
        midstamp(k, "harr")
        p4(k, L)
        midstamp(k, "p4end")
        if L == 0: p1_second(k)
    OPT["stamp"] = real_stamp
    epilogue(k, 1)
    ks.append(k); ls.append((k, 256, 256, 163840))
    return ks, ls

if __name__ == "__main__":
    out = sys.argv[1]
    for a in sys.argv[2:]:
        key, val = a.split("=")
        OPT[key] = {"True": True, "False": False}.get(val, int(val) if val.isdigit() and key != "stl" else val)
    ks, ls = make()
    open(out, "w").write(build_file(ks, ls, G.HEADER))
    open(out + ".names", "w").write("\n".join(" ".join(getattr(k, "stnames", [])) for k in ks) + "\n" + OPT["mapping"])
    for k in ks: print(k.name, "lines", len(k.lines), "nops", k.nnop, "maxv", k.maxv, "maxa", getattr(k, "maxa", -1), "maxs", k.maxs)
```
